```python
import torch

def _softmax(x, axis=-1):
    return torch.softmax(x, dim=axis)
def _gelu(x):
    return torch.nn.functional.gelu(x, approximate="tanh")
def _silu(x):
    return torch.nn.functional.silu(x)
def _sigmoid(x):
    return torch.sigmoid(x)
def _layernorm(x, axis=-1, eps=1e-5):
    m = x.mean(dim=axis, keepdim=True)
    v = x.var(dim=axis, keepdim=True, unbiased=False)
    return (x - m) / torch.sqrt(v + eps)
def _scatter_add(tgt, idx, src, axis=0):
    return tgt.clone().index_add_(axis, idx, src)
def _segment_sum(src, seg, n):
    out = torch.zeros((n,) + src.shape[1:], dtype=src.dtype)
    return out.index_add_(0, seg, src)
def _pad(x, pw):
    flat = tuple(v for pair in reversed(pw) for v in pair)
    return torch.nn.functional.pad(x, flat)

kernel_name = 'sequential_preLN__compressed_kv_cla__glu_gated_glu__prompt'

def setup_inputs():

    _w = (lambda a: (lambda t: t.to(torch.bfloat16) if t.is_floating_point() else t)(torch.as_tensor(a)))
    def _A_setup():
        B, H, Sq, Sk, D, M = 1, 32, 2048, 2048, 128, 512
        Dc = 4 * D
        return {
            "x": _w((lambda *s: torch.randn(*s, dtype=torch.bfloat16) * 0.05)(B, Sq, M)),
            "c_kv": _w((lambda *s: torch.randn(*s, dtype=torch.bfloat16) * 0.4)(B, Sk, Dc)),
            "w_q": _w((lambda *s: torch.randn(*s, dtype=torch.bfloat16) * 3.2)(M, H, D) * (M ** -0.5)),
            "w_uk": _w((lambda *s: torch.randn(*s, dtype=torch.bfloat16) * 3.2)(Dc, H, D) * (Dc ** -0.5)),
            "w_uv": _w((lambda *s: torch.randn(*s, dtype=torch.bfloat16) * 0.4)(Dc, H, D) * (Dc ** -0.5)),
            "w_o": _w((lambda *s: torch.randn(*s, dtype=torch.bfloat16) * 0.4)(H, D, M) * ((H * D) ** -0.5)),
        }
    _A_in = _A_setup()

    def _B_setup():
        B, S, D, F = 1, 2048, 512, 1792
        return {
            "x": _w((lambda *s: torch.randn(*s, dtype=torch.bfloat16) * 0.05)(B, S, D)),
            "w_gate": _w((lambda *s: torch.randn(*s, dtype=torch.bfloat16) * 0.05)(D, F)),
            "w_up": _w((lambda *s: torch.randn(*s, dtype=torch.bfloat16) * 0.05)(D, F)),
            "w_down": _w((lambda *s: torch.randn(*s, dtype=torch.bfloat16) * 0.05)(F, D)),
        }
    _B_in = _B_setup()

    return {
        "A_x": _A_in["x"],
        "A_c_kv": _A_in["c_kv"],
        "A_w_q": _A_in["w_q"],
        "A_w_uk": _A_in["w_uk"],
        "A_w_uv": _A_in["w_uv"],
        "A_w_o": _A_in["w_o"],
        "B_x": _B_in["x"],
        "B_w_gate": _B_in["w_gate"],
        "B_w_up": _B_in["w_up"],
        "B_w_down": _B_in["w_down"],
    }

def reference(A_x, A_c_kv, A_w_q, A_w_uk, A_w_uv, A_w_o, B_x, B_w_gate, B_w_up, B_w_down):
    def _A_ref(x, c_kv, w_q, w_uk, w_uv, w_o):
        B, Sq, M = x.shape[0], x.shape[1], x.shape[2]
        Sk = c_kv.shape[1]
        H, D = w_q.shape[1], w_q.shape[2]
        q = torch.einsum("bqm,mhd->bhqd", x, w_q)
        k = torch.einsum("bkc,chd->bhkd", c_kv, w_uk)
        v = torch.einsum("bkc,chd->bhkd", c_kv, w_uv)
        scores = torch.einsum("bhqd,bhkd->bhqk", q, k) * (D ** -0.5)
        off = Sk - Sq
        qi = torch.arange(Sq)[:, None]
        kj = torch.arange(Sk)[None, :]
        cmask = kj <= (qi + off)
        scores = torch.where(cmask[None, None], scores, -1e9)
        p = _softmax(scores, axis=-1)
        ctx = torch.einsum("bhqk,bhkd->bhqd", p, v)
        return torch.einsum("bhqd,hdm->bqm", ctx, w_o)

    def _B_ref(x, w_gate, w_up, w_down):
        g = torch.einsum("bsd,df->bsf", x, w_gate)
        u = torch.einsum("bsd,df->bsf", x, w_up)
        h = _sigmoid(g) * u
        return torch.einsum("bsf,fd->bsd", h, w_down)

    x = A_x
    h = x + _A_ref(_layernorm(x, axis=-1), A_c_kv, A_w_q, A_w_uk, A_w_uv, A_w_o)
    h2 = h + _B_ref(_layernorm(h, axis=-1), B_w_gate, B_w_up, B_w_down)
    return h2
```

```python
from emit import Emitter, v, s, a
from gemm import VAlloc, SRDs, kernel_header, kernel_footer, WS_Q, WS_K, WS_V, WS_CTX, MB

C_SCALE = 0.08838834764831845 * 1.4426950408889634
NEG_BIG = '0xf149f2ca'
THR = 8.0 / C_SCALE


def f32hex(x):
    import struct
    return hex(struct.unpack('<I', struct.pack('<f', x))[0])


def gen_attn(E, name):
    kernel_header(E, name)
    V = VAlloc(1)
    sW, sT, sHead, sP, sWG, sQg, sKh = 3, 4, 5, 6, 7, 8, 9
    sTmp = 10
    sKoff, sVoff = 40, 41
    sCnt, sBlk, sQ0 = 42, 43, 44
    sC, sThr = 45, 46
    sNext = 47
    srd = SRDs(E, 12)
    sQ = srd.want('ws', WS_Q, 16 * MB)
    sK = srd.want('ws', WS_K, 16 * MB)
    sV = srd.want('ws', WS_V, 16 * MB)
    sO = srd.want('ws', WS_CTX, 16 * MB)
    Lend = f'{name}_end'
    E.I('s_cmp_ge_u32', 's2', 256)
    E.branch('s_cbranch_scc1', Lend)
    E.I('s_and_b32', s(sHead), 's2', 31)
    E.I('s_lshr_b32', s(sP), 's2', 5)
    srd.build()
    vLane, vL31, vHH = V.get(), V.get(), V.get()
    t0, t1, t2, t3 = V.get(), V.get(), V.get(), V.get()
    E.I('v_and_b32', v(vLane), 63, 'v0')
    E.I('v_lshrrev_b32', v(t0), 6, 'v0')
    E.I('v_readfirstlane_b32', s(sW), v(t0))
    E.I('v_and_b32', v(vL31), 31, 'v0')
    E.I('v_bfe_u32', v(vHH), 'v0', 5, 1)
    E.I('s_and_b32', s(sQg), s(sW), 3)
    E.I('s_lshr_b32', s(sKh), s(sW), 2)
    E.I('s_lshl_b32', s(sWG), s(sW), 10)
    E.I('s_mov_b32', s(sC), f32hex(C_SCALE))
    E.I('s_mov_b32', s(sThr), f32hex(THR))

    vKoff, vVoff = V.get(), V.get()
    E.I('v_lshrrev_b32', v(t0), 4, v(vLane))
    E.I('s_lshl_b32', s(sTmp), s(sW), 2)
    E.I('v_add_u32', v(t0), s(sTmp), v(t0))
    E.I('v_and_b32', v(t1), 15, v(t0))
    E.I('v_and_b32', v(t2), 15, v(vLane))
    E.I('v_xor_b32', v(t1), v(t1), v(t2))
    E.I('v_lshlrev_b32', v(t1), 4, v(t1))
    E.I('s_lshl_b32', s(sTmp), s(sHead), 19)
    E.I('v_lshl_add_u32', v(vKoff), v(t0), 8, v(t1))
    E.I('v_add_u32', v(vKoff), s(sTmp), v(vKoff))
    E.I('v_lshl_add_u32', v(vVoff), v(t0), 12, v(t1))
    E.I('v_add_u32', v(vVoff), s(sTmp), v(vVoff))

    vKa = [V.get() for _ in range(8)]
    vVa = [V.get() for _ in range(4)]
    E.I('v_and_b32', v(t1), 15, v(vL31))
    E.I('s_lshl_b32', s(sTmp), s(sKh), 14)
    E.I('v_lshlrev_b32', v(t0), 8, v(vL31))
    E.I('v_add_u32', v(t2), s(sTmp), v(t0))
    for t in range(8):
        E.I('v_add_u32', v(t3), 2 * t, v(vHH))
        E.I('v_xor_b32', v(t3), v(t3), v(t1))
        E.I('v_lshl_add_u32', v(vKa[t]), v(t3), 4, v(t2))
    E.I('s_lshl_b32', s(sTmp), s(sKh), 3)
    for u in range(4):
        E.I('v_add_u32', v(t3), 2 * u, v(vHH))
        E.I('v_add_u32', v(t3), s(sTmp), v(t3))
        E.I('v_xor_b32', v(t3), v(t3), v(t1))
        E.I('v_lshl_add_u32', v(vVa[u]), v(t3), 4, v(t0))
        E.I('v_add_u32', v(vVa[u]), 65536, v(vVa[u]))

    vQ = V.get(32, 4)
    vO = V.get(64, 4)
    vS = V.get(32, 4)
    vP = V.get(16, 4)
    NF = 8
    vF = V.get(4 * NF, 4)
    vM, vL, vMC, vThr = V.get(), V.get(), V.get(), V.get()
    vQa, vKey = V.get(), V.get()

    def issue_dma(par):
        for t in range(4):
            E.I('s_add_u32', 'm0', s(sWG), par * 32768 + t * 8192)
            E.I('s_add_u32', s(sT), s(sKoff), t * 32 * 256)
            E.I('buffer_load_dwordx4', v(vKoff), s(sK, 4), s(sT), mods='offen lds')
        for t in range(4):
            E.I('s_add_u32', 'm0', s(sWG), 65536 + par * 32768 + t * 8192)
            E.I('s_add_u32', s(sT), s(sVoff), t * 32 * 4096)
            E.I('buffer_load_dwordx4', v(vVoff), s(sV, 4), s(sT), mods='offen lds')

    def qk(par):
        seq = [(sub, t) for sub in range(2) for t in range(8)]
        PRE = NF - 1

        def rd(n):
            sub, t = seq[n]
            E.I('ds_read_b128', v(vF + 4 * (n % NF), 4), v(vKa[t]), mods=f'offset:{par * 32768 + sub * 8192}')
        for n in range(PRE):
            rd(n)
        for n, (sub, t) in enumerate(seq):
            if n + PRE < len(seq):
                rd(n + PRE)
            E.wait(lgkm=min(PRE, len(seq) - 1 - n))
            c = 0 if t == 0 else v(vS + 16 * sub, 16)
            E.I('v_mfma_f32_32x32x16_bf16', v(vS + 16 * sub, 16), v(vF + 4 * (n % NF), 4), v(vQ + 4 * t, 4), c)

    def pv(par):
        seq = [(u, dt) for u in range(4) for dt in range(4)]
        PRE = NF - 1

        def rd(n):
            u, dt = seq[n]
            E.I('ds_read_b128', v(vF + 4 * (n % NF), 4), v(vVa[u]), mods=f'offset:{par * 32768 + dt * 8192}')
        for n in range(PRE):
            rd(n)
        for n, (u, dt) in enumerate(seq):
            if n + PRE < len(seq):
                rd(n + PRE)
            E.wait(lgkm=min(PRE, len(seq) - 1 - n))
            E.I('v_mfma_f32_32x32x16_bf16', v(vO + 16 * dt, 16), v(vF + 4 * (n % NF), 4), v(vP + 4 * u, 4),
                v(vO + 16 * dt, 16))

    def softmax(masked):
        if masked:
            for sub in range(2):
                for r in range(16):
                    kk = 32 * sub + (r & 3) + 8 * (r >> 2)
                    E.I('v_cmp_ge_i32', 'vcc', v(vKey), kk)
                    E.I('v_cndmask_b32', v(vS + 16 * sub + r), v(t3), v(vS + 16 * sub + r), 'vcc')
        E.I('v_max3_f32', v(t0), v(vS), v(vS + 1), v(vS + 2))
        E.I('v_max3_f32', v(t1), v(vS + 3), v(vS + 4), v(vS + 5))
        for r in range(6, 30, 4):
            E.I('v_max3_f32', v(t0), v(t0), v(vS + r), v(vS + r + 1))
            E.I('v_max3_f32', v(t1), v(t1), v(vS + r + 2), v(vS + r + 3))
        E.I('v_max3_f32', v(t0), v(t0), v(vS + 30), v(vS + 31))
        E.I('v_max_f32', v(t0), v(t0), v(t1))
        E.I('v_mov_b32', v(t1), v(t0))
        E.I('v_permlane32_swap_b32', v(t0), v(t1))
        E.I('v_max_f32', v(t0), v(t0), v(t1))
        Lskip = E.newlabel(f'{name}_norescale')
        E.I('v_cmp_gt_f32', 'vcc', v(t0), v(vThr))
        E.branch('s_cbranch_vccz', Lskip)
        E.I('v_max_f32', v(t0), v(t0), v(vM))
        E.I('v_sub_f32', v(t1), v(vM), v(t0))
        E.I('v_mul_f32', v(t1), s(sC), v(t1))
        E.I('v_exp_f32', v(t1), v(t1))
        E.I('v_mov_b32', v(vM), v(t0))
        E.I('v_mul_f32', v(vMC), s(sC), v(t0))
        E.I('v_add_f32', v(vThr), s(sThr), v(t0))
        E.I('v_mul_f32', v(vL), v(vL), v(t1))
        for r in range(64):
            E.I('v_mul_f32', v(vO + r), v(vO + r), v(t1))
        E.label(Lskip)
        for r in range(32):
            E.I('v_fma_f32', v(vS + r), v(vS + r), s(sC), f'-{v(vMC)}')
        for r in range(32):
            E.I('v_exp_f32', v(vS + r), v(vS + r))
        for r in range(0, 32, 2):
            E.I('v_cvt_pk_bf16_f32', v(vP + r // 2), v(vS + r), v(vS + r + 1))
            E.I('v_add_f32', v(t0 if r % 4 else t1), v(vS + r), v(vS + r + 1))
            E.I('v_add_f32', v(vL), v(vL), v(t0 if r % 4 else t1))

    E.I('s_mov_b32', s(sKoff), 0)
    E.I('s_mov_b32', s(sVoff), 0)
    issue_dma(0)
    E.I('s_mov_b32', s(sBlk), 0)
    sPar = 48
    E.I('s_mov_b32', s(sPar), 0)
    Lblk = f'{name}_blk'
    E.label(Lblk)
    E.I('s_sub_u32', s(sTmp), 15, s(sP))
    E.I('s_cmp_eq_u32', s(sBlk), 0)
    E.I('s_cselect_b32', s(sCnt), s(sP), s(sTmp))
    E.I('s_lshl_b32', s(sQ0), s(sCnt), 7)
    E.I('s_lshl_b32', s(sTmp), s(sQg), 5)
    E.I('s_add_u32', s(sTmp), s(sTmp), s(sQ0))
    E.I('v_add_u32', v(t0), s(sTmp), v(vL31))
    E.I('v_lshlrev_b32', v(vQa), 8, v(t0))
    E.I('v_lshl_add_u32', v(vQa), v(vHH), 4, v(vQa))
    E.I('s_lshl_b32', s(sTmp), s(sHead), 19)
    E.I('v_add_u32', v(vQa), s(sTmp), v(vQa))
    for t in range(8):
        E.I('buffer_load_dwordx4', v(vQ + 4 * t, 4), v(vQa), s(sQ, 4), 0, mods=f'offen offset:{32 * t}')
    for r in range(64):
        E.I('v_mov_b32', v(vO + r), 0)
    E.I('v_mov_b32', v(vM), NEG_BIG)
    E.I('v_mov_b32', v(vThr), NEG_BIG)
    E.I('v_mov_b32', v(vL), 0)
    E.I('v_mov_b32', v(vMC), 0)
    E.I('s_lshl_b32', s(sTmp), s(sQg), 5)
    E.I('s_lshl_b32', s(sTmp + 1), s(sKh), 6)
    E.I('s_sub_u32', s(sTmp), s(sTmp), s(sTmp + 1))
    E.I('v_add_u32', v(vKey), s(sTmp), v(vL31))
    E.I('v_lshlrev_b32', v(t0), 2, v(vHH))
    E.I('v_sub_u32', v(vKey), v(vKey), v(t0))

    Lfull = [f'{name}_full0', f'{name}_full1']
    Ldiag = [f'{name}_diag0', f'{name}_diag1']
    E.I('s_cmp_eq_u32', s(sPar), 1)
    E.branch('s_cbranch_scc1', Lfull[1])
    for par in range(2):
        E.label(Lfull[par])
        E.I('s_cmp_eq_u32', s(sCnt), 0)
        E.branch('s_cbranch_scc1', Ldiag[par])
        E.wait(vm=0)
        E.barrier()
        E.I('s_add_u32', s(sKoff), s(sKoff), 128 * 256)
        E.I('s_add_u32', s(sVoff), s(sVoff), 256)
        issue_dma(par ^ 1)
        qk(par)
        softmax(False)
        pv(par)
        E.I('s_sub_u32', s(sCnt), s(sCnt), 1)
        if par == 1:
            E.branch('s_branch', Lfull[0])
    Lmerge = f'{name}_merge'
    for par in range(2):
        E.label(Ldiag[par])
        E.wait(vm=0)
        E.barrier()
        E.I('s_mov_b32', s(sKoff), 0)
        E.I('s_mov_b32', s(sVoff), 0)
        issue_dma(par ^ 1)
        Lsk = E.newlabel(f'{name}_dskip')
        E.I('s_lshl_b32', s(sTmp), s(sKh), 1)
        E.I('s_cmp_lt_u32', s(sQg), s(sTmp))
        E.branch('s_cbranch_scc1', Lsk)
        E.I('v_mov_b32', v(t3), NEG_BIG)
        qk(par)
        softmax(True)
        pv(par)
        E.label(Lsk)
        E.I('s_mov_b32', s(sPar), par ^ 1)
        E.I('s_mov_b32', s(sNext), par * 32768)
        if par == 0:
            E.branch('s_branch', Lmerge)
    E.label(Lmerge)
    E.wait(lgkm=0)
    E.barrier()
    E.I('v_mov_b32', v(t0), v(vL))
    E.I('v_permlane32_swap_b32', v(vL), v(t0))
    E.I('v_add_f32', v(vL), v(vL), v(t0))
    E.I('s_lshl_b32', s(sTmp), s(sQg), 13)
    E.I('s_add_u32', s(sTmp), s(sTmp), s(sNext))
    E.I('s_lshl_b32', s(sTmp + 1), s(sKh), 16)
    E.I('v_lshlrev_b32', v(t2), 4, v(vLane))
    E.I('v_add_u32', v(t2), s(sTmp), v(t2))
    E.I('v_add_u32', v(t1), s(sTmp + 1), v(t2))
    E.I('s_xor_b32', s(sTmp + 1), s(sTmp + 1), 65536)
    E.I('v_add_u32', v(t2), s(sTmp + 1), v(t2))
    Lk1, Lj = E.newlabel(f'{name}_mk1'), E.newlabel(f'{name}_mj')
    E.I('s_cmp_eq_u32', s(sKh), 1)
    E.branch('s_cbranch_scc1', Lk1)
    for kh in range(2):
        give = vO + 32 * (1 - kh)
        if kh == 1:
            E.label(Lk1)
        for q in range(8):
            E.I('ds_write_b128', v(t1), v(give + 4 * q, 4), mods=f'offset:{1024 * q}')
        if kh == 0:
            E.branch('s_branch', Lj)
    E.label(Lj)
    E.I('v_lshlrev_b32', v(t3), 3, v(vLane))
    E.I('s_lshl_b32', s(sTmp), s(sW), 9)
    E.I('s_add_u32', s(sTmp), s(sTmp), 131072)
    E.I('v_add_u32', v(t0), s(sTmp), v(t3))
    E.I('v_mov_b32', v(vS), v(vM))
    E.I('v_mov_b32', v(vS + 1), v(vL))
    E.I('ds_write_b64', v(t0), v(vS, 2))
    E.I('s_xor_b32', s(sTmp), s(sTmp), 2048)
    E.I('v_add_u32', v(t0), s(sTmp), v(t3))
    E.wait(lgkm=0)
    E.barrier()
    E.I('ds_read_b64', v(vS + 2, 2), v(t0))
    for q in range(8):
        E.I('ds_read_b128', v(vQ + 4 * q, 4), v(t2), mods=f'offset:{1024 * q}')
    E.wait(lgkm=0)
    mm, a1, a2 = vS + 4, vS + 5, vS + 6
    E.I('v_max_f32', v(mm), v(vM), v(vS + 2))
    E.I('v_sub_f32', v(a1), v(vM), v(mm))
    E.I('v_sub_f32', v(a2), v(vS + 2), v(mm))
    E.I('v_mul_f32', v(a1), s(sC), v(a1))
    E.I('v_mul_f32', v(a2), s(sC), v(a2))
    E.I('v_exp_f32', v(a1), v(a1))
    E.I('v_exp_f32', v(a2), v(a2))
    E.I('v_mul_f32', v(mm), v(vL), v(a1))
    E.I('v_fma_f32', v(mm), v(vS + 3), v(a2), v(mm))
    E.I('v_rcp_f32', v(mm), v(mm))
    E.I('v_mul_f32', v(a1), v(a1), v(mm))
    E.I('v_mul_f32', v(a2), v(a2), v(mm))
    E.I('s_lshl_b32', s(sTmp), s(sQg), 5)
    E.I('s_add_u32', s(sTmp), s(sTmp), s(sQ0))
    E.I('v_add_u32', v(t0), s(sTmp), v(vL31))
    E.I('v_lshlrev_b32', v(t0), 13, v(t0))
    E.I('v_lshl_add_u32', v(t0), v(vHH), 4, v(t0))
    E.I('s_lshl_b32', s(sTmp), s(sHead), 8)
    E.I('s_lshl_b32', s(sTmp + 1), s(sKh), 7)
    E.I('s_add_u32', s(sTmp), s(sTmp), s(sTmp + 1))
    E.I('v_add_u32', v(t0), s(sTmp), v(t0))
    Lk1, Lj = E.newlabel(f'{name}_sk1'), E.newlabel(f'{name}_sj')
    E.I('s_cmp_eq_u32', s(sKh), 1)
    E.branch('s_cbranch_scc1', Lk1)
    for kh in range(2):
        keep = vO + 32 * kh
        if kh == 1:
            E.label(Lk1)
        for r in range(32):
            E.I('v_mul_f32', v(keep + r), v(keep + r), v(a1))
            E.I('v_fma_f32', v(keep + r), v(vQ + r), v(a2), v(keep + r))
        for g in range(4):
            for d in range(4):
                E.I('v_cvt_pk_bf16_f32', v(vP + 4 * g + d), v(keep + 8 * g + 2 * d), v(keep + 8 * g + 2 * d + 1))
            E.I('buffer_store_dwordx4', v(vP + 4 * g, 4), v(t0), s(sO, 4), 0, mods=f'offen offset:{32 * g}')
        if kh == 0:
            E.branch('s_branch', Lj)
    E.label(Lj)
    E.I('s_add_u32', s(sBlk), s(sBlk), 1)
    E.I('s_cmp_lt_u32', s(sBlk), 2)
    E.branch('s_cbranch_scc1', Lblk)
    E.label(Lend)
    E.I('s_endpgm')
    kernel_footer(E, name, V.n)
    return 131072 + 4096
```

```python
import re

_RV = re.compile(r'^(-?)(?:abs\()?([va])(\d+)\)?$')
_RVR = re.compile(r'^([va])\[(\d+):(\d+)\]$')
_RS = re.compile(r'^s(\d+)$')
_RSR = re.compile(r'^s\[(\d+):(\d+)\]$')

TRANS = ('v_exp_f32', 'v_log_f32', 'v_rcp_f32', 'v_rsq_f32', 'v_sqrt_f32', 'v_sin_f32', 'v_cos_f32')


def vregs(op):
    op = op.strip()
    m = _RV.match(op)
    if m:
        return {int(m.group(3)) + (1000 if m.group(2) == 'a' else 0)}
    m = _RVR.match(op)
    if m:
        b = 1000 if m.group(1) == 'a' else 0
        return set(range(int(m.group(2)) + b, int(m.group(3)) + b + 1))
    return set()


def sregs(op):
    op = op.strip()
    if op in ('vcc', 'vcc_lo', 'vcc_hi'):
        return {'vcc'}
    if op == 'm0':
        return {'m0'}
    if op == 'exec':
        return {'exec'}
    m = _RS.match(op)
    if m:
        return {int(m.group(1))}
    m = _RSR.match(op)
    if m:
        return set(range(int(m.group(1)), int(m.group(2)) + 1))
    return set()


def v(n, cnt=1):
    return f'v{n}' if cnt == 1 else f'v[{n}:{n + cnt - 1}]'


def a(n, cnt=1):
    return f'a{n}' if cnt == 1 else f'a[{n}:{n + cnt - 1}]'


def s(n, cnt=1):
    return f's{n}' if cnt == 1 else f's[{n}:{n + cnt - 1}]'


class Emitter:
    def __init__(self):
        self.lines = []
        self.pos = 0
        self.vw = {}
        self.sw = {}
        self.m0w = -100
        self.store_rd = {}
        self.nlabel = 0

    def raw(self, text):
        self.lines.append(text)

    def comment(self, text):
        self.lines.append('    ; ' + text)

    def nop(self, n):
        while n > 0:
            k = min(n, 16)
            self.lines.append(f'    s_nop {k - 1}')
            self.pos += k
            n -= k

    def flush(self):
        need = 0
        for r, (p, kind, _) in self.vw.items():
            lim = {'mfma8': 12, 'mfma4': 8, 'dot': 3}.get(kind, 2)
            need = max(need, lim - (self.pos - p))
        for r, p in self.sw.items():
            need = max(need, 5 - (self.pos - p))
        need = max(need, 1 - (self.pos - self.m0w))
        for r, p in self.store_rd.items():
            need = max(need, 2 - (self.pos - p))
        if need > 0:
            self.nop(need)

    def label(self, name):
        self.flush()
        self.lines.append(f'{name}:')

    def newlabel(self, stem='L'):
        self.nlabel += 1
        return f'{stem}_{self.nlabel}'

    def I(self, op, *ops, mods=''):
        ops = [str(o) for o in ops]
        need = 0
        pos = self.pos

        def dist(p):
            return pos - p - 1 + 0

        is_mfma = op.startswith('v_mfma')
        is_valu = op.startswith('v_') and not is_mfma
        is_ds = op.startswith('ds_')
        is_buf = op.startswith('buffer_') or op.startswith('global_')
        is_lds_dma = is_buf and 'lds' in mods.split()
        is_store = is_buf and 'store' in op
        is_dswrite = is_ds and ('write' in op)
        is_salu = op.startswith('s_')
        vdst, vsrc, sdst, ssrc = set(), set(), set(), set()
        if is_mfma:
            vdst = vregs(ops[0])
            vsrc = vregs(ops[1]) | vregs(ops[2]) | vregs(ops[3])
        elif is_valu:
            if op.startswith('v_cmp'):
                sdst = sregs(ops[0])
                for o in ops[1:]:
                    vsrc |= vregs(o)
                    ssrc |= sregs(o)
            elif op.startswith('v_readfirstlane') or op.startswith('v_readlane'):
                sdst = sregs(ops[0])
                vsrc = vregs(ops[1])
                for o in ops[2:]:
                    ssrc |= sregs(o)
            elif op.startswith('v_permlane') and 'swap' in op:
                vdst = vregs(ops[0]) | vregs(ops[1])
                vsrc = set(vdst)
            else:
                vdst = vregs(ops[0])
                rest = ops[1:]
                if op in ('v_add_co_u32', 'v_addc_co_u32', 'v_sub_co_u32'):
                    sdst = sregs(ops[1])
                    rest = ops[2:]
                for o in rest:
                    vsrc |= vregs(o)
                    ssrc |= sregs(o)
                if op.startswith('v_fmac') or op.startswith('v_dot2c') or op.startswith('v_accvgpr_write') and False:
                    vsrc |= vdst
                if op == 'v_cndmask_b32' and len(ops) == 3:
                    ssrc |= {'vcc'}
        elif is_ds:
            if is_dswrite:
                for o in ops:
                    vsrc |= vregs(o)
            else:
                vdst = vregs(ops[0])
                for o in ops[1:]:
                    vsrc |= vregs(o)
        elif is_buf:
            if is_store:
                for o in ops:
                    vsrc |= vregs(o)
                    ssrc |= sregs(o)
            elif is_lds_dma:
                for o in ops:
                    vsrc |= vregs(o)
                    ssrc |= sregs(o)
            else:
                vdst = vregs(ops[0])
                for o in ops[1:]:
                    vsrc |= vregs(o)
                    ssrc |= sregs(o)

        mk = None
        if is_mfma:
            mk = 'mfma8' if '32x32x16' in op else 'mfma4'

        for r in vsrc | vdst:
            if r not in self.vw:
                continue
            p, kind, extra = self.vw[r]
            d = dist(p)
            if kind in ('mfma8', 'mfma4'):
                big = 12 if kind == 'mfma8' else 8
                if is_mfma:
                    cset = vregs(ops[3])
                    abset = vregs(ops[1]) | vregs(ops[2])
                    if r in abset:
                        need = max(need, big - d)
                    if r in cset or r in vdst:
                        if extra == (ops[0]) and ops[3] == ops[0] and kind == mk:
                            pass
                        else:
                            need = max(need, (big - 2) - d)
                else:
                    need = max(need, big - d)
            else:
                if kind == 'dot' and (is_valu or is_mfma or r in vsrc):
                    if not (op == extra and r not in (vregs(ops[1]) | vregs(ops[2]))):
                        need = max(need, 3 - d)
                if r in vsrc:
                    if is_mfma:
                        need = max(need, 2 - d)
                    elif is_valu:
                        if kind == 'trans' and op not in TRANS:
                            need = max(need, 1 - d)
                        if op.startswith('v_permlane') or 'dpp' in op or 'row_' in mods or 'quad_perm' in mods:
                            need = max(need, 2 - d)
                        if op.startswith('v_readfirstlane') or op.startswith('v_readlane'):
                            need = max(need, 1 - d)
        if is_valu or is_mfma:
            for r in vdst:
                if r in self.store_rd:
                    need = max(need, 2 - dist(self.store_rd[r]))
        elif (is_ds or is_buf) and vdst:
            for r in vdst:
                if r in self.store_rd:
                    need = max(need, 1 - dist(self.store_rd[r]))
        for r in ssrc:
            if r in self.sw:
                d = dist(self.sw[r])
                if is_buf:
                    need = max(need, 5 - d)
                elif is_valu:
                    need = max(need, (4 if 'lane' in op else 2) - d)
        if is_lds_dma:
            need = max(need, 1 - dist(self.m0w))
        if need > 0:
            self.nop(need)
        pos = self.pos
        text = f'    {op} ' + ', '.join(ops)
        if mods:
            text += ' ' + mods
        self.lines.append(text)
        if is_mfma:
            for r in vdst:
                self.vw[r] = (pos, mk, ops[0])
        elif is_valu:
            k = 'trans' if op in TRANS else ('dot' if op.startswith('v_dot') else 'valu')
            for r in vdst:
                self.vw[r] = (pos, k, op if k == 'dot' else None)
            for r in sdst:
                self.sw[r] = pos
        elif (is_ds or is_buf) and vdst:
            for r in vdst:
                self.vw.pop(r, None)
        if is_store and ('x4' in op or 'x3' in op):
            for r in vregs(ops[0]):
                self.store_rd[r] = pos
        if is_salu and ops and ops[0] == 'm0':
            self.m0w = pos
        if is_salu:
            for o in ops[:1]:
                for r in sregs(o):
                    self.sw.pop(r, None)
        self.pos += 1

    def branch(self, op, target):
        self.flush()
        self.lines.append(f'    {op} {target}')
        self.pos += 1

    def wait(self, vm=None, lgkm=None):
        parts = []
        if vm is not None:
            parts.append(f'vmcnt({vm})')
        if lgkm is not None:
            parts.append(f'lgkmcnt({lgkm})')
        self.lines.append('    s_waitcnt ' + ' '.join(parts))
        self.pos += 1

    def barrier(self):
        self.lines.append('    s_barrier')
        self.pos += 1

    def text(self):
        return '\n'.join(self.lines) + '\n'
```

```python
from emit import Emitter, v, s, a

WS_Q = 0
WS_K = 16 << 20
WS_V = 32 << 20
WS_CTX = 48 << 20
WS_H = 64 << 20
WS_HH = 66 << 20
WS_BYTES = 268435456

ARG = dict(x=0, ckv=8, wq=16, wuk=24, wuv=32, wo=40, bx=48, wg=56, wu=64, wd=72, out=80, dbg=88, ws=96)


class VAlloc:
    def __init__(self, start=1):
        self.n = start

    def get(self, cnt=1, align=1):
        self.n = (self.n + align - 1) // align * align
        r = self.n
        self.n += cnt
        return r


def kernel_header(E, name):
    E.raw('.text')
    E.raw(f'.globl {name}')
    E.raw('.p2align 8')
    E.raw(f'.type {name},@function')
    E.raw(f'{name}:')


def kernel_footer(E, name, nvgpr, nsgpr=102):
    nv = (nvgpr + 3) // 4 * 4
    E.raw('.section .rodata,"a"')
    E.raw('.p2align 6')
    E.raw(f'.amdhsa_kernel {name}')
    E.raw(f'  .amdhsa_next_free_vgpr {nv}')
    E.raw(f'  .amdhsa_next_free_sgpr {nsgpr}')
    E.raw(f'  .amdhsa_accum_offset {nv}')
    E.raw('  .amdhsa_group_segment_fixed_size 0')
    E.raw('  .amdhsa_kernarg_size 104')
    E.raw('  .amdhsa_user_sgpr_count 2')
    E.raw('  .amdhsa_user_sgpr_kernarg_segment_ptr 1')
    E.raw('  .amdhsa_system_sgpr_workgroup_id_x 1')
    E.raw('.end_amdhsa_kernel')


class SRDs:
    def __init__(self, E, sbase):
        self.E = E
        self.next = sbase
        self.req = []

    def want(self, arg, off, nbytes):
        r = self.next
        self.next += 4
        self.req.append((r, arg, off, nbytes))
        return r

    def build(self):
        E = self.E
        for r, arg, off, nbytes in self.req:
            E.I('s_load_dwordx2', s(r, 2), 's[0:1]', ARG[arg])
        E.wait(lgkm=0)
        for r, arg, off, nbytes in self.req:
            if off:
                E.I('s_add_u32', s(r), s(r), off)
                E.I('s_addc_u32', s(r + 1), s(r + 1), 0)
            E.I('s_and_b32', s(r + 1), s(r + 1), '0xffff')
            E.I('s_mov_b32', s(r + 2), nbytes)
            E.I('s_mov_b32', s(r + 3), '0x00020000')


def swz_a(RB):
    return (1, 7) if RB == 128 else (0, 15)


def gen_gemm(E, name, cfg):
    BM, BN, BK = cfg['BM'], cfg['BN'], cfg['BK']
    WM, WN, WK = cfg['WM'], cfg['WN'], cfg['WK']
    NST = cfg['NST']
    NW = WM * WN * WK
    jobs = cfg['jobs']
    regions = cfg['regions']
    assert sum(regions) == BN
    TM, TN = BM // WM // 32, BN // WN // 32
    assert TM == 2 and TN == 2
    STEPS = BK // 16 // WK
    RBA = BK * 2
    A_BYTES = BM * RBA
    reg_off = []
    o = A_BYTES
    for rw in regions:
        reg_off.append(o)
        o += BK * rw * 2
    STAGE_BYTES = o
    SCR = NST * STAGE_BYTES
    lds_total = SCR + NW * 512
    if cfg.get('red'):
        lds_total = max(lds_total, NW * 16384)
    cfg['lds'] = lds_total
    assert lds_total <= 163840

    kernel_header(E, name)
    V = VAlloc(1)
    sW, sT, sM0, sN0, sWG = 3, 4, 5, 6, 7
    sTmp = 8
    srd = SRDs(E, 12)
    for j in jobs:
        j['sA'] = srd.want(*j['A'])
        j['sW'] = [srd.want(*w) for w in j['W']]
        j['sO'] = srd.want(*j['O'])
        if 'R' in j:
            j['sR'] = srd.want(*j['R'])
    assert srd.next <= 100

    E.I('s_cmp_ge_u32', 's2', cfg['nwg'])
    Lend = f'{name}_end'
    E.branch('s_cbranch_scc1', Lend)
    cfg['tilemap'](E, sM0, sN0, sTmp)
    srd.build()

    vLane = V.get()
    vL31 = V.get()
    vHH = V.get()
    vT0, vT1, vT2, vT3 = V.get(), V.get(), V.get(), V.get()
    E.I('v_and_b32', v(vLane), 63, 'v0')
    E.I('v_lshrrev_b32', v(vT0), 6, 'v0')
    E.I('v_readfirstlane_b32', s(sW), v(vT0))
    E.I('v_and_b32', v(vL31), 31, 'v0')
    E.I('v_bfe_u32', v(vHH), 'v0', 5, 1)
    sWm, sWn, sWk = 96, 97, 98
    E.I('s_and_b32', s(sWn), s(sW), WN - 1)
    E.I('s_lshr_b32', s(sTmp), s(sW), {1: 0, 2: 1, 4: 2}[WN])
    E.I('s_and_b32', s(sWm), s(sTmp), WM - 1)
    E.I('s_lshr_b32', s(sWk), s(sTmp), {1: 0, 2: 1, 4: 2, 8: 3}[WM])
    E.I('s_lshl_b32', s(sWG), s(sW), 10)

    RA = 1024 // RBA
    CPR_A = RBA // 16
    NA = BM // RA // NW
    assert NA * RA * NW == BM
    lda_set = sorted(set(j['lda'] for j in jobs))
    vAoff = {}
    sh, mk = swz_a(RBA)
    for lda in lda_set:
        r = V.get()
        vAoff[lda] = r
        E.I('v_lshrrev_b32', v(vT0), CPR_A.bit_length() - 1, v(vLane))
        E.I('s_mul_i32', s(sTmp), s(sW), RA)
        E.I('v_add_u32', v(vT0), s(sTmp), v(vT0))
        E.I('v_lshrrev_b32', v(vT1), sh, v(vT0))
        E.I('v_and_b32', v(vT1), mk, v(vT1))
        E.I('v_and_b32', v(vT2), CPR_A - 1, v(vLane))
        E.I('v_xor_b32', v(vT1), v(vT1), v(vT2))
        E.I('v_lshlrev_b32', v(vT1), 4, v(vT1))
        E.I('v_add_u32', v(vT0), s(sM0), v(vT0))
        E.I('s_mov_b32', s(sTmp), lda)
        E.I('v_mul_lo_u32', v(vT0), v(vT0), s(sTmp))
        E.I('v_add_u32', v(r), v(vT0), v(vT1))
    vWoff = {}
    NWD = []
    for ri, rw in enumerate(regions):
        RBW = rw * 2
        RW_ = 1024 // RBW
        CPR_W = RBW // 16
        n = BK // RW_ // NW
        assert n * RW_ * NW == BK
        NWD.append(n)
        for ldw in sorted(set(j['ldw'] for j in jobs)):
            r = V.get()
            vWoff[(ri, ldw)] = r
            E.I('v_lshrrev_b32', v(vT0), CPR_W.bit_length() - 1, v(vLane))
            if RBW == 256:
                E.I('v_and_b32', v(vT1), 3, v(vT0))
            else:
                E.I('v_bfe_u32', v(vT1), v(vT0), 1, 1)
            E.I('v_lshlrev_b32', v(vT1), 2, v(vT1))
            E.I('v_and_b32', v(vT2), CPR_W - 1, v(vLane))
            E.I('v_xor_b32', v(vT1), v(vT1), v(vT2))
            E.I('v_lshlrev_b32', v(vT1), 4, v(vT1))
            E.I('s_mul_i32', s(sTmp), s(sW), RW_)
            E.I('v_add_u32', v(vT0), s(sTmp), v(vT0))
            E.I('s_mov_b32', s(sTmp), ldw)
            E.I('v_mul_lo_u32', v(vT0), v(vT0), s(sTmp))
            E.I('v_add_u32', v(vT0), v(vT0), v(vT1))
            E.I('s_lshl_b32', s(sTmp), s(sN0), 1)
            E.I('v_add_u32', v(r), s(sTmp), v(vT0))

    vXa = [V.get() for _ in range(STEPS)]
    E.I('s_lshl_b32', s(sTmp), s(sWm), 6)
    E.I('v_add_u32', v(vT0), s(sTmp), v(vL31))
    E.I('v_lshrrev_b32', v(vT1), sh, v(vT0))
    E.I('v_and_b32', v(vT1), mk, v(vT1))
    E.I('v_mul_u32_u24', v(vT0), RBA, v(vT0))
    E.I('s_mul_i32', s(sTmp), s(sWk), 2 * STEPS)
    E.I('v_add_u32', v(vT2), s(sTmp), v(vHH))
    for ks in range(STEPS):
        E.I('v_add_u32', v(vT3), 2 * ks, v(vT2))
        E.I('v_xor_b32', v(vT3), v(vT3), v(vT1))
        E.I('v_lshl_add_u32', v(vXa[ks]), v(vT3), 4, v(vT0))
    perms = sorted(set(bool(j.get('perm')) for j in jobs))
    vWa = {}
    fr = cfg['frag']
    for pm in perms:
        for jn in range(TN):
            ri, cm, cc = fr(jn)
            RBW = regions[ri] * 2
            r = V.get()
            vWa[(pm, jn)] = r
            E.I('v_bfe_u32', v(vT0), v(vLane), 2, 2)
            E.I('v_lshrrev_b32', v(vT1), 5, v(vLane))
            E.I('v_lshlrev_b32', v(vT1), 2 if pm else 3, v(vT1))
            E.I('v_add_u32', v(vT1), v(vT1), v(vT0))
            E.I('s_mul_i32', s(sTmp), s(sWk), 16 * STEPS)
            E.I('v_add_u32', v(vT1), s(sTmp), v(vT1))
            E.I('v_mul_u32_u24', v(vT1), RBW, v(vT1))
            E.I('v_bfe_u32', v(vT2), v(vLane), 4, 1)
            E.I('v_lshlrev_b32', v(vT2), 4, v(vT2))
            E.I('v_and_b32', v(vT3), 3, v(vLane))
            E.I('v_lshl_add_u32', v(vT2), v(vT3), 2, v(vT2))
            E.I('s_mul_i32', s(sTmp), s(sWn), cm)
            E.I('s_add_u32', s(sTmp), s(sTmp), cc)
            E.I('v_add_u32', v(vT2), s(sTmp), v(vT2))
            E.I('v_lshlrev_b32', v(vT2), 1, v(vT2))
            if RBW == 256:
                E.I('v_lshlrev_b32', v(vT3), 6, v(vT0))
            else:
                E.I('v_bfe_u32', v(vT3), v(vT0), 1, 1)
                E.I('v_lshlrev_b32', v(vT3), 6, v(vT3))
            E.I('v_xor_b32', v(vT2), v(vT2), v(vT3))
            E.I('v_add_u32', v(vT1), v(vT1), v(vT2))
            E.I('v_add_u32', v(r), reg_off[ri], v(vT1))

    acc = V.get(64, 4)
    fX = [[V.get(4, 4) for _ in range(TM)] for _ in range(2)]
    fW = [[V.get(4, 4) for _ in range(TN)] for _ in range(2)]
    anyln = any(j.get('ln') for j in jobs)
    if anyln:
        vS1 = [V.get() for _ in range(TM)]
        vS2 = [V.get() for _ in range(TM)]
        vCS = [V.get() for _ in range(TN)]
        vOnes = V.get()
        E.I('v_mov_b32', v(vOnes), '0x3f803f80')
    cfg['V'] = V

    def A(i, jn):
        return acc + (i * TN + jn) * 16

    stages = []
    for ji, j in enumerate(jobs):
        for k0 in range(0, j['K'], BK):
            stages.append((ji, k0))
    vm = dict(n=0)
    last_dma = {}

    def issue_dma(st):
        ji, k0 = stages[st]
        j = jobs[ji]
        base = (st % NST) * STAGE_BYTES
        for t in range(NA):
            E.I('s_add_u32', 'm0', s(sWG), base + t * NW * 1024)
            E.I('s_mov_b32', s(sT), k0 * 2 + t * NW * RA * j['lda'])
            E.I('buffer_load_dwordx4', v(vAoff[j['lda']]), s(j['sA'], 4), s(sT), mods='offen lds')
            vm['n'] += 1
        for ri, rw in enumerate(regions):
            RW_ = 1024 // (rw * 2)
            for t in range(NWD[ri]):
                E.I('s_add_u32', 'm0', s(sWG), base + reg_off[ri] + t * NW * 1024)
                E.I('s_mov_b32', s(sT), (k0 + t * NW * RW_) * j['ldw'])
                E.I('buffer_load_dwordx4', v(vWoff[(ri, j['ldw'])]), s(j['sW'][ri], 4), s(sT), mods='offen lds')
                vm['n'] += 1
        last_dma[st] = vm['n']

    addr_regs = vXa + list(vWa.values())
    cur_slot = [0]

    def set_slot(slot):
        d = (slot - cur_slot[0]) * STAGE_BYTES
        if d:
            for r in addr_regs:
                if d > 0:
                    E.I('v_add_u32', v(r), d, v(r))
                else:
                    E.I('v_subrev_u32', v(r), -d, v(r))
        cur_slot[0] = slot

    def read_frags(j, ks, setid):
        pm = bool(j.get('perm'))
        for i in range(TM):
            E.I('ds_read_b128', v(fX[setid][i], 4), v(vXa[ks]), mods=f'offset:{i * 32 * RBA}')
        for jn in range(TN):
            RBW = regions[fr(jn)[0]] * 2
            for hf in range(2):
                koff = 16 * ks + (8 * hf if pm else 4 * hf)
                E.I('ds_read_b64_tr_b16', v(fW[setid][jn] + 2 * hf, 2), v(vWa[(pm, jn)]), mods=f'offset:{koff * RBW}')

    for st in range(min(NST - 1, len(stages))):
        issue_dma(st)

    for st, (ji, k0) in enumerate(stages):
        j = jobs[ji]
        first = (k0 == 0)
        lastk = (k0 + BK >= j['K'])
        E.wait(vm=min(63, vm['n'] - last_dma[st]))
        E.barrier()
        if st + NST - 1 < len(stages):
            issue_dma(st + NST - 1)
        set_slot(st % NST)
        if first and j.get('ln'):
            for r in vS1 + vS2 + vCS:
                E.I('v_mov_b32', v(r), 0)
        read_frags(j, 0, 0)
        for ks in range(STEPS):
            cur = ks & 1
            if ks + 1 < STEPS:
                read_frags(j, ks + 1, cur ^ 1)
                E.wait(lgkm=TM + 2 * TN)
            else:
                E.wait(lgkm=0)
            for i in range(TM):
                for jn in range(TN):
                    c = 0 if (first and ks == 0) else v(A(i, jn), 16)
                    if j.get('swap', True):
                        E.I('v_mfma_f32_32x32x16_bf16', v(A(i, jn), 16), v(fW[cur][jn], 4), v(fX[cur][i], 4), c)
                    else:
                        E.I('v_mfma_f32_32x32x16_bf16', v(A(i, jn), 16), v(fX[cur][i], 4), v(fW[cur][jn], 4), c)
                    if j.get('ln'):
                        q = i * TN + jn
                        for ii in range(TM):
                            E.I('v_dot2_f32_bf16', v(vS1[ii]), v(fX[cur][ii] + q), v(vOnes), v(vS1[ii]))
                            E.I('v_dot2_f32_bf16', v(vS2[ii]), v(fX[cur][ii] + q), v(fX[cur][ii] + q), v(vS2[ii]))
                        for jj in range(TN):
                            E.I('v_dot2_f32_bf16', v(vCS[jj]), v(fW[cur][jj] + q), v(vOnes), v(vCS[jj]))
        if lastk:
            env = dict(E=E, V=V, j=j, A=A, vL31=vL31, vHH=vHH, vLane=vLane, sWm=sWm, sWn=sWn, sWk=sWk, sW=sW,
                       sM0=sM0, sN0=sN0, sTmp=sTmp, sT=sT, vT=[vT0, vT1, vT2, vT3], fX=fX, fW=fW, vm=vm,
                       SCR=SCR, NW=NW, TM=TM, TN=TN)
            if j.get('ln'):
                env.update(vS1=vS1, vS2=vS2, vCS=vCS)
            j['epi'](env)

    E.label(Lend)
    E.I('s_endpgm')
    kernel_footer(E, name, V.n)
    return lds_total


def half_sum(E, r, tmp):
    E.I('v_mov_b32', v(tmp), v(r))
    E.I('v_permlane32_swap_b32', v(r), v(tmp))
    E.I('v_add_f32', v(r), v(r), v(tmp))


def ln_prepare(env):
    E, V = env['E'], env['V']
    vS1, vS2, vCS = env['vS1'], env['vS2'], env['vCS']
    t0, t1 = env['vT'][0], env['vT'][1]
    for i in range(env['TM']):
        half_sum(E, vS1[i], t0)
        half_sum(E, vS2[i], t0)
        E.I('v_mul_f32', v(vS1[i]), '0x3b000000', v(vS1[i]))
        E.I('v_mul_f32', v(vS2[i]), '0x3b000000', v(vS2[i]))
        E.I('v_fma_f32', v(vS2[i]), f'-{v(vS1[i])}', v(vS1[i]), v(vS2[i]))
        E.I('v_max_f32', v(vS2[i]), 0, v(vS2[i]))
        E.I('v_add_f32', v(vS2[i]), '0x3727c5ac', v(vS2[i]))
        E.I('v_rsq_f32', v(vS2[i]), v(vS2[i]))
        E.I('v_mul_f32', v(vS1[i]), v(vS1[i]), v(vS2[i]))
        E.I('v_sub_f32', v(vS1[i]), 0, v(vS1[i]))
    if 'vCSx' not in env['j']:
        env['j']['vCSx'] = V.get(32, 4)
    cs = env['j']['vCSx']
    E.I('s_lshl_b32', s(env['sTmp']), s(env['sW']), 9)
    E.I('s_add_u32', s(env['sTmp']), s(env['sTmp']), env['SCR'])
    E.I('v_lshlrev_b32', v(t1), 2, v(env['vL31']))
    E.I('v_add_u32', v(t1), s(env['sTmp']), v(t1))
    for jn in range(env['TN']):
        half_sum(E, vCS[jn], t0)
        E.I('ds_write_b32', v(t1), v(vCS[jn]), mods=f'offset:{128 * jn}')
    E.I('v_lshlrev_b32', v(t1), 4, v(env['vHH']))
    E.I('v_add_u32', v(t1), s(env['sTmp']), v(t1))
    E.wait(lgkm=0)
    for jn in range(env['TN']):
        for q in range(4):
            E.I('ds_read_b128', v(cs + 16 * jn + 4 * q, 4), v(t1), mods=f'offset:{128 * jn + 32 * q}')
    E.wait(lgkm=0)
    return vS2, vS1, cs


def ln_apply(env, vR, vMR, cs):
    E, A = env['E'], env['A']
    for i in range(env['TM']):
        for jn in range(env['TN']):
            for r in range(16):
                E.I('v_mul_f32', v(A(i, jn) + r), v(A(i, jn) + r), v(vR[i]))
                E.I('v_fma_f32', v(A(i, jn) + r), v(vMR[i]), v(cs + 16 * jn + r), v(A(i, jn) + r))


def pack_store(env, base_reg, vaddr, soff, off, srd):
    E = env['E']
    f = env['fX'][0][0]
    for u in range(2):
        for d in range(4):
            E.I('v_cvt_pk_bf16_f32', v(f + 4 * u + d), v(base_reg + 8 * u + 2 * d), v(base_reg + 8 * u + 2 * d + 1))
    for u in range(2):
        E.I('buffer_store_dwordx4', v(f + 4 * u, 4), v(vaddr), s(srd, 4), soff, mods=f'offen offset:{off + 32 * u}')
        env['vm']['n'] += 1


def epi_qk(env):
    E, j, A = env['E'], env['j'], env['A']
    if j.get('ln'):
        vR, vMR, cs = ln_prepare(env)
        ln_apply(env, vR, vMR, cs)
    t0, t1 = env['vT'][0], env['vT'][1]
    sT = env['sTmp']
    E.I('s_lshl_b32', s(sT), s(env['sWm']), 6)
    E.I('s_add_u32', s(sT), s(sT), s(env['sM0']))
    E.I('v_add_u32', v(t0), s(sT), v(env['vL31']))
    E.I('v_lshlrev_b32', v(t0), 8, v(t0))
    E.I('v_lshl_add_u32', v(t0), v(env['vHH']), 4, v(t0))
    E.I('s_lshl_b32', s(sT), s(env['sN0']), 12)
    E.I('s_lshl_b32', s(sT + 1), s(env['sWn']), 7)
    E.I('s_add_u32', s(sT), s(sT), s(sT + 1))
    E.I('v_add_u32', v(t0), s(sT), v(t0))
    E.I('v_add_u32', v(t1), 8192, v(t0))
    for i in range(2):
        for jn in range(2):
            pack_store(env, A(i, jn), (t0, t1)[i], 0, 64 * jn, j['sO'])


def epi_v(env):
    E, j, A = env['E'], env['j'], env['A']
    t0, t1 = env['vT'][0], env['vT'][1]
    sT = env['sTmp']
    E.I('s_lshl_b32', s(sT), s(env['sWn']), 6)
    E.I('v_add_u32', v(t0), s(sT), v(env['vL31']))
    E.I('v_lshlrev_b32', v(t0), 12, v(t0))
    E.I('v_lshl_add_u32', v(t0), v(env['vHH']), 4, v(t0))
    E.I('s_lshl_b32', s(sT), s(env['sN0']), 12)
    E.I('s_lshl_b32', s(sT + 1), s(env['sWm']), 6)
    E.I('s_add_u32', s(sT + 1), s(sT + 1), s(env['sM0']))
    E.I('s_lshl_b32', s(sT + 1), s(sT + 1), 1)
    E.I('s_add_u32', s(sT), s(sT), s(sT + 1))
    E.I('v_add_u32', v(t0), s(sT), v(t0))
    E.I('v_add_u32', v(t1), 131072, v(t0))
    for i in range(2):
        for jn in range(2):
            pack_store(env, A(i, jn), (t0, t1)[jn], 0, 64 * i, j['sO'])


def epi_glu(env):
    E, j, A = env['E'], env['j'], env['A']
    vR, vMR, cs = ln_prepare(env)
    ln_apply(env, vR, vMR, cs)
    t0, t1 = env['vT'][0], env['vT'][1]
    sT = env['sTmp']
    for i in range(2):
        for r in range(16):
            g, u = A(i, 0) + r, A(i, 1) + r
            E.I('v_mul_f32', v(g), '0xbfb8aa3b', v(g))
            E.I('v_exp_f32', v(g), v(g))
            E.I('v_add_f32', v(g), 1.0, v(g))
            E.I('v_rcp_f32', v(g), v(g))
            E.I('v_mul_f32', v(g), v(g), v(u))
    E.I('s_lshl_b32', s(sT), s(env['sWm']), 6)
    E.I('s_add_u32', s(sT), s(sT), s(env['sM0']))
    E.I('v_add_u32', v(t0), s(sT), v(env['vL31']))
    E.I('v_mul_u32_u24', v(t0), 3584, v(t0))
    E.I('v_lshl_add_u32', v(t0), v(env['vHH']), 4, v(t0))
    E.I('s_lshl_b32', s(sT), s(env['sWn']), 5)
    E.I('s_add_u32', s(sT), s(sT), s(env['sN0']))
    E.I('s_lshl_b32', s(sT), s(sT), 1)
    E.I('v_add_u32', v(t0), s(sT), v(t0))
    E.I('v_add_u32', v(t1), 32 * 3584, v(t0))
    for i in range(2):
        pack_store(env, A(i, 0), (t0, t1)[i], 0, 0, j['sO'])


def epi_red(env):
    E, j, A, V = env['E'], env['j'], env['A'], env['V']
    NW = env['NW']
    t0, t1, t2 = env['vT'][0], env['vT'][1], env['vT'][2]
    sT = env['sTmp']
    acc = A(0, 0)
    QPW = 16 // NW
    res = V.get(2 * QPW, 2)
    E.I('v_add_u32', v(t2), s(env['sM0']), v(env['vL31']))
    E.I('v_lshlrev_b32', v(t2), 10, v(t2))
    E.I('v_lshl_add_u32', v(t2), v(env['vHH']), 3, v(t2))
    E.I('s_lshl_b32', s(sT), s(env['sN0']), 1)
    E.I('v_add_u32', v(t2), s(sT), v(t2))
    E.I('s_mul_i32', s(sT), s(env['sW']), QPW)
    E.I('s_lshr_b32', s(sT + 1), s(sT), 3)
    E.I('s_lshl_b32', s(sT + 1), s(sT + 1), 15)
    E.I('s_and_b32', s(sT + 2), s(sT), 7)
    E.I('s_lshl_b32', s(sT + 2), s(sT + 2), 4)
    E.I('s_add_u32', s(sT + 1), s(sT + 1), s(sT + 2))
    E.I('v_add_u32', v(t2), s(sT + 1), v(t2))
    for q in range(QPW):
        E.I('buffer_load_dwordx2', v(res + 2 * q, 2), v(t2), s(j['sR'], 4), 0, mods=f'offen offset:{16 * q}')
    E.wait(lgkm=0)
    E.barrier()
    E.I('v_lshlrev_b32', v(t0), 4, v(env['vLane']))
    E.I('s_lshl_b32', s(sT), s(env['sW']), 14)
    E.I('v_add_u32', v(t1), s(sT), v(t0))
    for q in range(16):
        E.I('ds_write_b128', v(t1), v(acc + 4 * q, 4), mods=f'offset:{1024 * q}')
    E.wait(lgkm=0)
    E.barrier()
    E.I('s_mul_i32', s(sT), s(env['sW']), 1024 * QPW)
    E.I('v_add_u32', v(t1), s(sT), v(t0))
    E.I('v_add_u32', v(t0), 65536, v(t1))
    for w in range(NW):
        for q in range(QPW):
            E.I('ds_read_b128', v(acc + (w * QPW + q) * 4, 4), v(t1 if w < 4 else t0),
                mods=f'offset:{(w % 4) * 16384 + 1024 * q}')
    E.wait(lgkm=0)
    for w in range(1, NW):
        for q in range(QPW):
            for r in range(4):
                E.I('v_add_f32', v(acc + q * 4 + r), v(acc + q * 4 + r), v(acc + (w * QPW + q) * 4 + r))
    E.wait(vm=0)
    for q in range(QPW):
        for d in range(2):
            x = res + 2 * q + d
            E.I('v_lshlrev_b32', v(t0), 16, v(x))
            E.I('v_and_b32', v(x), '0xffff0000', v(x))
            E.I('v_add_f32', v(acc + q * 4 + 2 * d), v(acc + q * 4 + 2 * d), v(t0))
            E.I('v_add_f32', v(acc + q * 4 + 2 * d + 1), v(acc + q * 4 + 2 * d + 1), v(x))
            E.I('v_cvt_pk_bf16_f32', v(x), v(acc + q * 4 + 2 * d), v(acc + q * 4 + 2 * d + 1))
        E.I('buffer_store_dwordx2', v(res + 2 * q, 2), v(t2), s(j['sO'], 4), 0, mods=f'offen offset:{16 * q}')


MB = 1 << 20


def cfg_k1():
    def tilemap(E, sM0, sN0, sT):
        E.I('s_and_b32', s(sN0), 's2', 31)
        E.I('s_lshl_b32', s(sN0), s(sN0), 7)
        E.I('s_lshr_b32', s(sM0), 's2', 5)
        E.I('s_lshl_b32', s(sM0), s(sM0), 8)
    jobs = [
        dict(A=('x', 0, 2 * MB), lda=1024, W=[('wq', 0, 4 * MB)], ldw=8192, K=512, O=('ws', WS_Q, 16 * MB),
             ln=True, swap=True, epi=epi_qk),
        dict(A=('ckv', 0, 2 * MB), lda=1024, W=[('wuk', 0, 4 * MB)], ldw=8192, K=512, O=('ws', WS_K, 16 * MB),
             swap=True, epi=epi_qk),
        dict(A=('ckv', 0, 2 * MB), lda=1024, W=[('wuv', 0, 4 * MB)], ldw=8192, K=512, O=('ws', WS_V, 16 * MB),
             swap=False, epi=epi_v),
    ]
    return dict(BM=256, BN=128, BK=64, WM=4, WN=2, WK=1, NST=3, regions=[128], jobs=jobs, nwg=256,
                frag=lambda jn: (0, 64, 32 * jn), tilemap=tilemap, grid=256, block=512)


def cfg_k4():
    def tilemap(E, sM0, sN0, sT):
        E.I('s_mul_hi_u32', s(sM0), 's2', 153391690)
        E.I('s_mul_i32', s(sT), s(sM0), 28)
        E.I('s_sub_u32', s(sN0), 's2', s(sT))
        E.I('s_lshl_b32', s(sN0), s(sN0), 6)
        E.I('s_lshl_b32', s(sM0), s(sM0), 8)
    WB = 512 * 1792 * 2
    jobs = [dict(A=('ws', WS_H, 2 * MB), lda=1024, W=[('wg', 0, WB), ('wu', 0, WB)], ldw=3584, K=512,
                 O=('ws', WS_HH, 2048 * 3584), ln=True, swap=True, epi=epi_glu)]
    return dict(BM=256, BN=128, BK=64, WM=4, WN=2, WK=1, NST=3, regions=[64, 64], jobs=jobs, nwg=224,
                frag=lambda jn: (jn, 32, 0), tilemap=tilemap, grid=224, block=512)


def cfg_red(which):
    def tilemap(E, sM0, sN0, sT):
        E.I('s_lshr_b32', s(sN0), 's2', 3)
        E.I('s_and_b32', s(sN0), s(sN0), 7)
        E.I('s_lshl_b32', s(sN0), s(sN0), 6)
        E.I('s_and_b32', s(sM0), 's2', 7)
        E.I('s_lshl_b32', s(sM0), s(sM0), 2)
        E.I('s_lshr_b32', s(sT), 's2', 6)
        E.I('s_add_u32', s(sM0), s(sM0), s(sT))
        E.I('s_lshl_b32', s(sM0), s(sM0), 6)
    if which == 3:
        jobs = [dict(A=('ws', WS_CTX, 16 * MB), lda=8192, W=[('wo', 0, 4 * MB)], ldw=1024, K=4096, perm=True,
                     O=('ws', WS_H, 2 * MB), R=('x', 0, 2 * MB), swap=True, epi=epi_red)]
    else:
        jobs = [dict(A=('ws', WS_HH, 2048 * 3584), lda=3584, W=[('wd', 0, 1792 * 1024)], ldw=1024, K=1792, perm=True,
                     O=('out', 0, 2 * MB), R=('ws', WS_H, 2 * MB), swap=True, epi=epi_red)]
    return dict(BM=64, BN=64, BK=128, WM=1, WN=1, WK=8, NST=4, regions=[64], jobs=jobs, nwg=256, red=True,
                frag=lambda jn: (0, 0, 32 * jn), tilemap=tilemap, grid=256, block=512)
```

```python
import sys
sys.path.insert(0, 'work')
from emit import Emitter
import gemm, attn, attn2

HDR = open('sequential_preLN__compressed_kv_cla__glu_gated_glu__prompt.s.ref').read().split('\n')
hdr = [l for l in HDR if l.startswith(';') and '@launch' not in l and 'Override launch' not in l and 'grid=ceil' not in l]


def build():
    E = Emitter()
    launches = []
    c1 = gemm.cfg_k1()
    lds = gemm.gen_gemm(E, 'k1_qkv_kernel', c1)
    launches.append(('k1_qkv_kernel', c1['grid'], c1['block'], lds))
    lds = attn2.gen_attn(E, 'k2_attn_kernel')
    launches.append(('k2_attn_kernel', 256, 512, lds))
    c3 = gemm.cfg_red(3)
    lds = gemm.gen_gemm(E, 'k3_oproj_kernel', c3)
    launches.append(('k3_oproj_kernel', c3['grid'], c3['block'], lds))
    c4 = gemm.cfg_k4()
    lds = gemm.gen_gemm(E, 'k4_glu_kernel', c4)
    launches.append(('k4_glu_kernel', c4['grid'], c4['block'], lds))
    c5 = gemm.cfg_red(5)
    lds = gemm.gen_gemm(E, 'k5_down_kernel', c5)
    launches.append(('k5_down_kernel', c5['grid'], c5['block'], lds))
    out = '\n'.join(hdr) + '\n'
    for n, g, b, l in launches:
        out += f'; @launch kernel={n} grid=({g},1,1) block=({b},1,1) lds={l}\n'
    out += '.amdgcn_target "amdgcn-amd-amdhsa--gfx950"\n'
    out += E.text()
    return out


if __name__ == '__main__':
    path = sys.argv[1] if len(sys.argv) > 1 else 'sequential_preLN__compressed_kv_cla__glu_gated_glu__prompt.s'
    open(path, 'w').write(build())
    print('written', path)
```

```python
from emit import Emitter, v, s, a
from gemm import VAlloc, SRDs, kernel_header, kernel_footer, WS_Q, WS_K, WS_V, WS_CTX, MB, X, ARG, STF
import os

NEG_BIG = '0xf149f2ca'
THR = '0x41c00000'


def gen_attn(E, name):
    kernel_header(E, name)
    V = VAlloc(1)
    sW, sT, sHead, sP, sWG, sQg, sKh = 3, 4, 5, 6, 7, 8, 9
    sTmp = 10
    sKoff, sVoff = 40, 41
    sCnt, sBlk, sQ0 = 42, 43, 44
    sNext, sPar, s4k = 47, 48, 49
    srd = SRDs(E, 12)
    sQ = srd.want('ws', WS_Q, 16 * MB)
    sK = srd.want('ws', WS_K, 16 * MB)
    sV = srd.want('ws', WS_V, 16 * MB)
    sO = srd.want('ws', WS_CTX, 16 * MB)
    Lend = f'{name}_end'
    E.I('s_cmp_ge_u32', 's2', 256)
    E.branch('s_cbranch_scc1', Lend)
    E.I('s_and_b32', s(sHead), 's2', 31)
    E.I('s_lshr_b32', s(sP), 's2', 5)
    srd.build()
    vLane, vL31, vHH = V.get(), V.get(), V.get()
    t0, t1, t2, t3 = V.get(), V.get(), V.get(), V.get()
    E.I('v_and_b32', v(vLane), 63, 'v0')
    E.I('v_lshrrev_b32', v(t0), 6, 'v0')
    E.I('v_readfirstlane_b32', s(sW), v(t0))
    E.I('v_and_b32', v(vL31), 31, 'v0')
    E.I('v_bfe_u32', v(vHH), 'v0', 5, 1)
    E.I('s_and_b32', s(sQg), s(sW), 3)
    E.I('s_lshr_b32', s(sKh), s(sW), 2)
    E.I('s_lshl_b32', s(sWG), s(sW), 10)

    vKoff, vVoff = V.get(), V.get()
    E.I('v_lshlrev_b32', v(t0), 4, v(vLane))
    E.I('s_lshl_b32', s(sTmp), s(sHead), 19)
    E.I('s_add_u32', s(sTmp), s(sTmp), s(sWG))
    E.I('v_add_u32', v(vKoff), s(sTmp), v(t0))
    E.I('v_mov_b32', v(vVoff), v(vKoff))
    E.I('s_mov_b32', s(s4k), 4096)

    G = dict(grp=0)

    def dma_k(par):
        out = []
        for t in range(8 if G['grp'] == 0 else 0):
            def go(t=t):
                E.I('s_add_u32', 'm0', s(sWG), par * 32768 + t * 4096)
                E.I('s_add_u32', s(sT), s(sKoff), t * 4096)
                E.I('buffer_load_dwordx4', v(vKoff), s(sK, 4), s(sT), mods='offen lds')
            out.append(go)
        return out

    def dma_v(par):
        out = []
        for t in range(8 if G['grp'] == 0 else 0):
            def go(t=t):
                E.I('s_add_u32', 'm0', s(sWG), 65536 + par * 32768 + t * 4096)
                E.I('s_add_u32', s(sT), s(sVoff), (t >> 1) * 131072 + (t & 1) * 4096)
                E.I('buffer_load_dwordx4', v(vVoff), s(sV, 4), s(sT), mods='offen lds')
            out.append(go)
        return out

    E.I('s_mov_b32', s(sKoff), 0)
    E.I('s_mov_b32', s(sVoff), 0)
    Lnd = name + '_nodma0'
    E.I('s_cmp_ge_u32', s(sW), 4)
    E.branch('s_cbranch_scc1', Lnd)
    for g in dma_k(0):
        g()
    E.label(Lnd)

    vKa, vVa = V.get(), V.get()
    E.I('v_lshlrev_b32', v(t0), 4, v(vLane))
    E.I('s_lshl_b32', s(sTmp), s(sKh), 14)
    E.I('v_add_u32', v(vKa), s(sTmp), v(t0))
    E.I('s_lshl_b32', s(sTmp), s(sKh), 12)
    E.I('s_add_u32', s(sTmp), s(sTmp), 65536)
    E.I('v_add_u32', v(vVa), s(sTmp), v(t0))

    vQ = V.get(32, 4)
    vO = V.get(64, 4)
    vS = [V.get(32, 4), V.get(32, 4)]
    vNM = V.get(16, 4)
    NF = 8
    vF = V.get(4 * NF, 4)
    vM, vL, vL2, vThr, vFloor = V.get(), V.get(), V.get(), V.get(), V.get()
    vQa, vKey, vNB = V.get(), V.get(), V.get()
    vMx = V.get()
    E.I('v_mov_b32', v(vNB), NEG_BIG)
    vStamp = V.get()
    E.I('s_mov_b32', 's99', 0)

    def stamp():
        if 'stamp' not in X:
            return
        E.I('s_memtime', 's[100:101]')
        E.wait(lgkm=0)
        E.I('s_and_b32', 'm0', 's99', 63)
        E.nop(2)
        E.I('v_writelane_b32', v(vStamp), 's100', 'm0')
        E.I('s_add_u32', 's99', 's99', 1)
    stamp()
    if 'stamp' in X:
        E.I('s_memrealtime', 's[94:95]')
        E.I('s_memtime', 's[92:93]')
        E.wait(lgkm=0)
    PRE = NF - 1

    def phase(seq, rd, mf, fillers, per):
        for n in range(PRE):
            rd(n)
        tot = len(fillers)
        pos = {getattr(f, 'tag', None): i + 1 for i, f in enumerate(fillers)}
        emitted = [0]

        def upto(k):
            while emitted[0] < k:
                fillers[emitted[0]]()
                emitted[0] += 1
        head = min(tot, per)
        upto(head)
        rest = tot - head
        for n in range(len(seq)):
            if n + PRE < len(seq):
                rd(n + PRE)
            if len(seq[n]) > 2 and seq[n][2] in pos:
                upto(pos[seq[n][2]])
            E.wait(lgkm=min(PRE, len(seq) - 1 - n))
            mf(n)
            upto(head + (rest * (n + 1) + len(seq) - 1) // len(seq))

    def qk_items(kpar, sb):
        out = []
        for sub in range(2):
            for t in range(8):
                def rd(f, sub=sub, t=t):
                    E.I('ds_read_b128', v(f, 4), v(vKa), mods=f'offset:{kpar * 32768 + sub * 8192 + t * 1024}')

                def mf(f, sub=sub, t=t):
                    c = v(vNM, 16) if t == 0 else v(vS[sb] + 16 * sub, 16)
                    E.I('v_mfma_f32_32x32x16_bf16', v(vS[sb] + 16 * sub, 16), v(f, 4), v(vQ + 4 * t, 4), c)
                out.append((rd, mf))
        return out

    def pv_items(vpar, sb):
        out = []
        for u in range(4):
            for dt in range(4):
                def rd(f, u=u, dt=dt):
                    E.I('ds_read_b128', v(f, 4), v(vVa), mods=f'offset:{vpar * 32768 + dt * 8192 + u * 1024}')

                def mf(f, u=u, dt=dt):
                    E.I('v_mfma_f32_32x32x16_bf16', v(vO + 16 * dt, 16), v(f, 4), v(vS[sb] + 8 * u, 4),
                        v(vO + 16 * dt, 16))
                out.append((rd, mf, ('p', u)))
        return out

    def run_items(items, fillers, per):
        phase(items, lambda n: items[n][0](vF + 4 * (n % NF)), lambda n: items[n][1](vF + 4 * (n % NF)), fillers, per)

    def qk_phase(kpar, sb, fillers, per):
        run_items(qk_items(kpar, sb), fillers, per)

    def pv_phase(vpar, sb, fillers, per):
        run_items(pv_items(vpar, sb), fillers, per)

    def F(op, *ops):
        return lambda: E.I(op, *ops)

    def soft_b(sb, groups=(0, 1, 2, 3)):
        S = vS[sb]
        out = []
        for g in groups:
            for r in range(8):
                out.append(F('v_exp_f32', v(S + 8 * g + r), v(S + 8 * g + r)))
            for d in range(4):
                a0, a1 = S + 8 * g + 2 * d, S + 8 * g + 2 * d + 1
                out.append(F('v_add_f32', v(vL), v(vL), v(a0)))
                out.append(F('v_add_f32', v(vL2), v(vL2), v(a1)))
                out.append(F('v_cvt_pk_bf16_f32', v(S + 8 * g + d), v(a0), v(a1)))
            out[-1].tag = ('p', g)
        return out

    def soft_a(sb, masked):
        S = vS[sb]
        out = []
        if masked:
            for sub in range(2):
                for r in range(16):
                    kk = 32 * sub + (r & 3) + 8 * (r >> 2)
                    out.append(F('v_cmp_ge_i32', 'vcc', v(vKey), kk))
                    out.append(F('v_cndmask_b32', v(S + 16 * sub + r), v(vNB), v(S + 16 * sub + r), 'vcc'))
        out.append(F('v_max3_f32', v(t0), v(S), v(S + 1), v(S + 2)))
        out.append(F('v_max3_f32', v(t1), v(S + 3), v(S + 4), v(S + 5)))
        for r in range(6, 30, 4):
            out.append(F('v_max3_f32', v(t0), v(t0), v(S + r), v(S + r + 1)))
            out.append(F('v_max3_f32', v(t1), v(t1), v(S + r + 2), v(S + r + 3)))
        out.append(F('v_max3_f32', v(t0), v(t0), v(S + 30), v(S + 31)))
        out.append(F('v_max_f32', v(t0), v(t0), v(t1)))
        out.append(F('v_mov_b32', v(t1), v(t0)))
        out.append(F('v_permlane32_swap_b32', v(t0), v(t1)))
        out.append(F('v_max_f32', v(vMx), v(t0), v(t1)))
        return out

    def check(sb):
        S = vS[sb]
        Lskip = E.newlabel(f'{name}_keep')
        E.I('v_cmp_gt_f32', 'vcc', v(vMx), v(vThr))
        E.branch('s_cbranch_vccz', Lskip)
        E.I('v_max_f32', v(t0), v(vMx), v(vFloor))
        E.I('v_sub_f32', v(t1), 0, v(t0))
        E.I('v_exp_f32', v(t1), v(t1))
        E.I('v_add_f32', v(vM), v(vM), v(t0))
        E.I('v_mov_b32', v(vThr), THR)
        E.I('v_mov_b32', v(vFloor), 0)
        for r in range(16):
            E.I('v_sub_f32', v(vNM + r), 0, v(vM))
        for r in range(32):
            E.I('v_sub_f32', v(S + r), v(S + r), v(t0))
        E.I('v_min_f32', v(t1), 1.0, v(t1))
        E.I('v_mul_f32', v(vL), v(vL), v(t1))
        E.I('v_mul_f32', v(vL2), v(vL2), v(t1))
        for r in range(64):
            E.I('v_mul_f32', v(vO + r), v(vO + r), v(t1))
        E.label(Lskip)

    def load_q(first):
        if first:
            E.I('s_lshl_b32', s(sTmp + 1), s(sP), 7)
        else:
            E.I('s_sub_u32', s(sTmp + 1), 15, s(sP))
            E.I('s_lshl_b32', s(sTmp + 1), s(sTmp + 1), 7)
        E.I('s_lshl_b32', s(sTmp), s(sQg), 5)
        E.I('s_add_u32', s(sTmp), s(sTmp), s(sTmp + 1))
        E.I('s_lshl_b32', s(sTmp), s(sTmp), 8)
        E.I('v_lshlrev_b32', v(vQa), 4, v(vLane))
        E.I('s_lshl_b32', s(sTmp + 1), s(sHead), 19)
        E.I('s_add_u32', s(sTmp), s(sTmp), s(sTmp + 1))
        E.I('v_add_u32', v(vQa), s(sTmp), v(vQa))
        for t in range(8):
            E.I('buffer_load_dwordx4', v(vQ + 4 * t, 4), v(vQa), s(sQ, 4), s(s4k) if t >= 4 else 0,
                mods=f'offen offset:{1024 * (t & 3)}')

    def mix(fl, d, start, step):
        for n, g in enumerate(d):
            fl.insert(min(len(fl), start + step * n), g)
        return fl

    def body(par, d, masked):
        fl = mix(soft_b(par) + soft_a(par ^ 1, masked), d, 4, 7 if not masked else 10)
        run_items(qk_items(par ^ 1, par ^ 1) + pv_items(par, par), fl, 6)
        stamp()
        stamp()

    def sync():
        E.wait(vm=0, lgkm=0)
        E.barrier()

    load_q(True)
    E.I('s_mov_b32', s(sBlk), 0)
    E.I('s_mov_b32', s(sPar), 0)
    Lfin = name + '_fin'
    E.I('s_cmp_ge_u32', s(sW), 4)
    E.branch('s_cbranch_scc1', f'{name}_blk1')
    for grp in range(2):
        G['grp'] = grp
        Lblk = f'{name}_blk{grp}'
        E.label(Lblk)
        E.I('s_sub_u32', s(sTmp), 15, s(sP))
        E.I('s_cmp_eq_u32', s(sBlk), 0)
        E.I('s_cselect_b32', s(sCnt), s(sP), s(sTmp))
        E.I('s_lshl_b32', s(sQ0), s(sCnt), 7)
        for r in range(64):
            E.I('v_mov_b32', v(vO + r), 0)
        for r in range(16):
            E.I('v_mov_b32', v(vNM + r), 0)
        E.I('v_mov_b32', v(vM), 0)
        E.I('v_mov_b32', v(vThr), '0xff800000')
        E.I('v_mov_b32', v(vFloor), '0xff800000')
        E.I('v_mov_b32', v(vL), 0)
        E.I('v_mov_b32', v(vL2), 0)
        E.I('s_lshl_b32', s(sTmp), s(sQg), 5)
        E.I('s_lshl_b32', s(sTmp + 1), s(sKh), 6)
        E.I('s_sub_u32', s(sTmp), s(sTmp), s(sTmp + 1))
        E.I('v_add_u32', v(vKey), s(sTmp), v(vL31))
        E.I('v_lshlrev_b32', v(t0), 2, v(vHH))
        E.I('v_sub_u32', v(vKey), v(vKey), v(t0))

        L = lambda tag, par: f'{name}_{tag}{par}_{grp}'
        E.I('s_cmp_eq_u32', s(sPar), 1)
        E.branch('s_cbranch_scc1', L('pro', 1))
        for par in range(2):
            E.label(L('pro', par))
            sync()
            E.I('s_cmp_eq_u32', s(sCnt), 0)
            E.branch('s_cbranch_scc1', L('pro1', par))
            E.I('s_add_u32', s(sKoff), s(sKoff), 128 * 256)
            qk_phase(par, par, dma_k(par ^ 1) + dma_v(par), 1)
            for f in soft_a(par, False):
                f()
            check(par)
            E.branch('s_branch', L('loop', par))
            E.label(L('pro1', par))
            E.I('s_mov_b32', s(sKoff), 0)
            qk_phase(par, par, dma_v(par) + dma_k(par ^ 1), 1)
            for f in soft_a(par, True):
                f()
            check(par)
            E.branch('s_branch', L('epi', par))
        for par in range(2):
            E.label(L('loop', par))
            E.I('s_sub_u32', s(sCnt), s(sCnt), 1)
            stamp()
            sync()
            stamp()
            E.I('s_cmp_eq_u32', s(sCnt), 0)
            E.branch('s_cbranch_scc1', L('last', par))
            E.I('s_add_u32', s(sKoff), s(sKoff), 128 * 256)
            E.I('s_add_u32', s(sVoff), s(sVoff), 8192)
            body(par, dma_k(par) + dma_v(par ^ 1), False)
            check(par ^ 1)
            E.branch('s_branch', L('loop', par ^ 1))
            E.label(L('last', par))
            E.I('s_mov_b32', s(sKoff), 0)
            E.I('s_add_u32', s(sVoff), s(sVoff), 8192)
            body(par, dma_v(par ^ 1) + dma_k(par), True)
            check(par ^ 1)
            E.branch('s_branch', L('epi', par ^ 1))
        Lmerge = f'{name}_merge{grp}'
        for par in range(2):
            E.label(L('epi', par))
            E.wait(vm=8, lgkm=0)
            E.barrier()
            load_q(False)
            pv_phase(par, par, soft_b(par), 22)
            E.I('s_mov_b32', s(sPar), par ^ 1)
            E.I('s_mov_b32', s(sNext), par * 32768)
            E.I('s_mov_b32', s(sVoff), 0)
            if par == 0:
                E.branch('s_branch', Lmerge)
        E.label(Lmerge)
        E.wait(lgkm=0)
        E.barrier()
        E.I('v_add_f32', v(vL), v(vL), v(vL2))
        E.I('v_mov_b32', v(t0), v(vL))
        E.I('v_permlane32_swap_b32', v(vL), v(t0))
        E.I('v_add_f32', v(vL), v(vL), v(t0))
        E.I('s_lshl_b32', s(sTmp), s(sQg), 13)
        E.I('s_add_u32', s(sTmp), s(sTmp), s(sNext))
        E.I('s_lshl_b32', s(sTmp + 1), s(sKh), 16)
        E.I('v_lshlrev_b32', v(t2), 4, v(vLane))
        E.I('v_add_u32', v(t2), s(sTmp), v(t2))
        E.I('v_add_u32', v(t1), s(sTmp + 1), v(t2))
        E.I('s_xor_b32', s(sTmp + 1), s(sTmp + 1), 65536)
        E.I('v_add_u32', v(t2), s(sTmp + 1), v(t2))
        Lk1, Lj = E.newlabel(f'{name}_mk1'), E.newlabel(f'{name}_mj')
        E.I('s_cmp_eq_u32', s(sKh), 1)
        E.branch('s_cbranch_scc1', Lk1)
        for kh in range(2):
            give = vO + 32 * (1 - kh)
            if kh == 1:
                E.label(Lk1)
            for q in range(8):
                E.I('ds_write_b128', v(t1), v(give + 4 * q, 4), mods=f'offset:{1024 * q}')
            if kh == 0:
                E.branch('s_branch', Lj)
        E.label(Lj)
        S0 = vS[0]
        E.I('v_lshlrev_b32', v(t3), 3, v(vLane))
        E.I('s_lshl_b32', s(sTmp), s(sW), 9)
        E.I('s_add_u32', s(sTmp), s(sTmp), 131072)
        E.I('v_add_u32', v(t0), s(sTmp), v(t3))
        E.I('v_mov_b32', v(S0), v(vM))
        E.I('v_mov_b32', v(S0 + 1), v(vL))
        E.I('ds_write_b64', v(t0), v(S0, 2))
        E.I('s_xor_b32', s(sTmp), s(sTmp), 2048)
        E.I('v_add_u32', v(t0), s(sTmp), v(t3))
        E.wait(lgkm=0)
        E.barrier()
        E.I('ds_read_b64', v(S0 + 2, 2), v(t0))
        for q in range(8):
            E.I('ds_read_b128', v(vS[1] + 4 * q, 4), v(t2), mods=f'offset:{1024 * q}')
        E.wait(lgkm=0)
        mm, a1, a2 = S0 + 4, S0 + 5, S0 + 6
        E.I('v_max_f32', v(mm), v(vM), v(S0 + 2))
        E.I('v_sub_f32', v(a1), v(vM), v(mm))
        E.I('v_sub_f32', v(a2), v(S0 + 2), v(mm))
        E.I('v_exp_f32', v(a1), v(a1))
        E.I('v_exp_f32', v(a2), v(a2))
        E.I('v_mul_f32', v(mm), v(vL), v(a1))
        E.I('v_fma_f32', v(mm), v(S0 + 3), v(a2), v(mm))
        E.I('v_rcp_f32', v(mm), v(mm))
        E.I('v_mul_f32', v(a1), v(a1), v(mm))
        E.I('v_mul_f32', v(a2), v(a2), v(mm))
        E.I('s_lshl_b32', s(sTmp), s(sQg), 5)
        E.I('s_add_u32', s(sTmp), s(sTmp), s(sQ0))
        E.I('s_lshl_b32', s(sTmp), s(sTmp), 13)
        E.I('v_lshlrev_b32', v(t0), 4, v(vLane))
        E.I('s_lshl_b32', s(sTmp + 1), s(sHead), 13)
        E.I('s_add_u32', s(sTmp), s(sTmp), s(sTmp + 1))
        E.I('s_lshl_b32', s(sTmp + 1), s(sKh), 12)
        E.I('s_add_u32', s(sTmp), s(sTmp), s(sTmp + 1))
        E.I('v_add_u32', v(t0), s(sTmp), v(t0))
        vPk = vS[0] + 8
        Lk1, Lj = E.newlabel(f'{name}_sk1'), E.newlabel(f'{name}_sj')
        E.I('s_cmp_eq_u32', s(sKh), 1)
        E.branch('s_cbranch_scc1', Lk1)
        for kh in range(2):
            keep = vO + 32 * kh
            if kh == 1:
                E.label(Lk1)
            for r in range(32):
                E.I('v_mul_f32', v(keep + r), v(keep + r), v(a1))
                E.I('v_fma_f32', v(keep + r), v(vS[1] + r), v(a2), v(keep + r))
            for g in range(4):
                for d in range(4):
                    E.I('v_cvt_pk_bf16_f32', v(vPk + 4 * g + d), v(keep + 8 * g + 2 * d), v(keep + 8 * g + 2 * d + 1))
                E.I('buffer_store_dwordx4', v(vPk + 4 * g, 4), v(t0), s(sO, 4), 0, mods=f'offen offset:{1024 * g} {STF}')
            if kh == 0:
                E.branch('s_branch', Lj)
        E.label(Lj)
        E.I('s_add_u32', s(sBlk), s(sBlk), 1)
        E.I('s_cmp_lt_u32', s(sBlk), 2)
        E.branch('s_cbranch_scc1', Lblk)
        if grp == 0:
            E.branch('s_branch', Lfin)
    E.label(Lfin)
    if 'stamp' in X:
        E.I('s_memrealtime', 's[90:91]')
        E.I('s_memtime', 's[88:89]')
        E.wait(lgkm=0)
        E.I('s_sub_u32', 's90', 's90', 's94')
        E.I('s_sub_u32', 's88', 's88', 's92')
        E.I('v_writelane_b32', v(vStamp), 's90', 62)
        E.I('v_writelane_b32', v(vStamp), 's88', 63)
        E.I('s_load_dwordx2', 's[96:97]', 's[0:1]', ARG['ws'])
        E.wait(lgkm=0)
        E.I('s_add_u32', 's96', 's96', 128 << 20)
        E.I('s_addc_u32', 's97', 's97', 0)
        E.I('s_and_b32', 's97', 's97', '0xffff')
        E.I('s_mov_b32', 's98', 1 << 20)
        E.I('s_mov_b32', 's99', '0x00020000')
        E.I('v_lshlrev_b32', v(t0), 2, 'v0')
        E.I('s_lshl_b32', s(sTmp), 's2', 11)
        E.I('v_add_u32', v(t0), s(sTmp), v(t0))
        E.I('buffer_store_dword', v(vStamp), v(t0), 's[96:99]', 0, mods='offen')
    E.label(Lend)
    E.I('s_endpgm')
    kernel_footer(E, name, V.n)
    return 131072 + 4096
```

```python
import re

_RV = re.compile(r'^(-?)(?:abs\()?([va])(\d+)\)?$')
_RVR = re.compile(r'^([va])\[(\d+):(\d+)\]$')
_RS = re.compile(r'^s(\d+)$')
_RSR = re.compile(r'^s\[(\d+):(\d+)\]$')

TRANS = ('v_exp_f32', 'v_log_f32', 'v_rcp_f32', 'v_rsq_f32', 'v_sqrt_f32', 'v_sin_f32', 'v_cos_f32')


def vregs(op):
    op = op.strip()
    m = _RV.match(op)
    if m:
        return {int(m.group(3)) + (1000 if m.group(2) == 'a' else 0)}
    m = _RVR.match(op)
    if m:
        b = 1000 if m.group(1) == 'a' else 0
        return set(range(int(m.group(2)) + b, int(m.group(3)) + b + 1))
    return set()


def sregs(op):
    op = op.strip()
    if op in ('vcc', 'vcc_lo', 'vcc_hi'):
        return {'vcc'}
    if op == 'm0':
        return {'m0'}
    if op == 'exec':
        return {'exec'}
    m = _RS.match(op)
    if m:
        return {int(m.group(1))}
    m = _RSR.match(op)
    if m:
        return set(range(int(m.group(1)), int(m.group(2)) + 1))
    return set()


def v(n, cnt=1):
    return f'v{n}' if cnt == 1 else f'v[{n}:{n + cnt - 1}]'


def a(n, cnt=1):
    return f'a{n}' if cnt == 1 else f'a[{n}:{n + cnt - 1}]'


def s(n, cnt=1):
    return f's{n}' if cnt == 1 else f's[{n}:{n + cnt - 1}]'


class Emitter:
    def __init__(self):
        self.lines = []
        self.pos = 0
        self.vw = {}
        self.sw = {}
        self.m0w = -100
        self.store_rd = {}
        self.nlabel = 0

    def raw(self, text):
        self.lines.append(text)

    def comment(self, text):
        self.lines.append('    ; ' + text)

    def nop(self, n):
        while n > 0:
            k = min(n, 16)
            self.lines.append(f'    s_nop {k - 1}')
            self.pos += k
            n -= k

    def flush(self):
        need = 0
        for r, (p, kind, _) in self.vw.items():
            lim = {'mfma8': 12, 'mfma4': 8, 'dot': 3}.get(kind, 2)
            need = max(need, lim - (self.pos - p))
        for r, p in self.sw.items():
            need = max(need, 5 - (self.pos - p))
        need = max(need, 1 - (self.pos - self.m0w))
        for r, p in self.store_rd.items():
            need = max(need, 2 - (self.pos - p))
        if need > 0:
            self.nop(need)

    def label(self, name):
        self.flush()
        self.lines.append(f'{name}:')

    def newlabel(self, stem='L'):
        self.nlabel += 1
        return f'{stem}_{self.nlabel}'

    def I(self, op, *ops, mods=''):
        ops = [str(o) for o in ops]
        need = 0
        pos = self.pos

        def dist(p):
            return pos - p - 1 + 0

        is_mfma = op.startswith('v_mfma')
        is_valu = op.startswith('v_') and not is_mfma
        is_ds = op.startswith('ds_')
        is_buf = op.startswith('buffer_') or op.startswith('global_')
        is_lds_dma = is_buf and 'lds' in mods.split()
        is_store = is_buf and 'store' in op
        is_dswrite = is_ds and ('write' in op)
        is_salu = op.startswith('s_')
        vdst, vsrc, sdst, ssrc = set(), set(), set(), set()
        if is_mfma:
            vdst = vregs(ops[0])
            vsrc = vregs(ops[1]) | vregs(ops[2]) | vregs(ops[3])
        elif is_valu:
            if op.startswith('v_cmp'):
                sdst = sregs(ops[0])
                for o in ops[1:]:
                    vsrc |= vregs(o)
                    ssrc |= sregs(o)
            elif op.startswith('v_readfirstlane') or op.startswith('v_readlane'):
                sdst = sregs(ops[0])
                vsrc = vregs(ops[1])
                for o in ops[2:]:
                    ssrc |= sregs(o)
            elif op.startswith('v_permlane') and 'swap' in op:
                vdst = vregs(ops[0]) | vregs(ops[1])
                vsrc = set(vdst)
            else:
                vdst = vregs(ops[0])
                rest = ops[1:]
                if op in ('v_add_co_u32', 'v_addc_co_u32', 'v_sub_co_u32'):
                    sdst = sregs(ops[1])
                    rest = ops[2:]
                for o in rest:
                    vsrc |= vregs(o)
                    ssrc |= sregs(o)
                if op.startswith('v_fmac') or op.startswith('v_dot2c') or op.startswith('v_accvgpr_write') and False:
                    vsrc |= vdst
                if op == 'v_cndmask_b32' and len(ops) == 3:
                    ssrc |= {'vcc'}
        elif is_ds:
            if is_dswrite:
                for o in ops:
                    vsrc |= vregs(o)
            else:
                vdst = vregs(ops[0])
                for o in ops[1:]:
                    vsrc |= vregs(o)
        elif is_buf:
            if is_store:
                for o in ops:
                    vsrc |= vregs(o)
                    ssrc |= sregs(o)
            elif is_lds_dma:
                for o in ops:
                    vsrc |= vregs(o)
                    ssrc |= sregs(o)
            else:
                vdst = vregs(ops[0])
                for o in ops[1:]:
                    vsrc |= vregs(o)
                    ssrc |= sregs(o)

        mk = None
        if is_mfma:
            mk = 'mfma8' if '32x32x16' in op else 'mfma4'

        for r in vsrc | vdst:
            if r not in self.vw:
                continue
            p, kind, extra = self.vw[r]
            d = dist(p)
            if kind in ('mfma8', 'mfma4'):
                big = 12 if kind == 'mfma8' else 8
                if is_mfma:
                    cset = vregs(ops[3])
                    abset = vregs(ops[1]) | vregs(ops[2])
                    if r in abset:
                        need = max(need, big - d)
                    if r in cset or r in vdst:
                        if extra == (ops[0]) and ops[3] == ops[0] and kind == mk:
                            pass
                        else:
                            need = max(need, (big - 2) - d)
                else:
                    need = max(need, big - d)
            else:
                if kind == 'dot' and (is_valu or is_mfma or r in vsrc):
                    if not (op == extra and r not in (vregs(ops[1]) | vregs(ops[2]))):
                        need = max(need, 3 - d)
                if r in vsrc:
                    if is_mfma:
                        need = max(need, 2 - d)
                    elif is_valu:
                        if kind == 'trans' and op not in TRANS:
                            need = max(need, 1 - d)
                        if op.startswith('v_permlane') or 'dpp' in op or 'row_' in mods or 'quad_perm' in mods:
                            need = max(need, 2 - d)
                        if op.startswith('v_readfirstlane') or op.startswith('v_readlane'):
                            need = max(need, 1 - d)
        if is_valu or is_mfma:
            for r in vdst:
                if r in self.store_rd:
                    need = max(need, 2 - dist(self.store_rd[r]))
        elif (is_ds or is_buf) and vdst:
            for r in vdst:
                if r in self.store_rd:
                    need = max(need, 1 - dist(self.store_rd[r]))
        for r in ssrc:
            if r in self.sw:
                d = dist(self.sw[r])
                if is_buf:
                    need = max(need, 5 - d)
                elif is_valu:
                    need = max(need, (4 if 'lane' in op else 2) - d)
        if is_lds_dma:
            need = max(need, 1 - dist(self.m0w))
        if need > 0:
            self.nop(need)
        pos = self.pos
        text = f'    {op} ' + ', '.join(ops)
        if mods:
            text += ' ' + mods
        self.lines.append(text)
        if is_mfma:
            for r in vdst:
                self.vw[r] = (pos, mk, ops[0])
        elif is_valu:
            k = 'trans' if op in TRANS else ('dot' if op.startswith('v_dot') else 'valu')
            for r in vdst:
                self.vw[r] = (pos, k, op if k == 'dot' else None)
            for r in sdst:
                self.sw[r] = pos
        elif (is_ds or is_buf) and vdst:
            for r in vdst:
                self.vw.pop(r, None)
        if is_store and ('x4' in op or 'x3' in op):
            for r in vregs(ops[0]):
                self.store_rd[r] = pos
        if is_salu and ops and ops[0] == 'm0':
            self.m0w = pos
        if is_salu:
            for o in ops[:1]:
                for r in sregs(o):
                    self.sw.pop(r, None)
        self.pos += 1

    def branch(self, op, target):
        self.flush()
        self.lines.append(f'    {op} {target}')
        self.pos += 1

    def fwd_branch(self, op, target):
        self.lines.append(f'    {op} {target}')
        self.pos += 1
        self.marks = getattr(self, 'marks', {})
        self.marks[target] = self.pos

    def fwd_label(self, name):
        m = self.marks.pop(name)
        d = self.pos - m
        for r, (p, kind, extra) in list(self.vw.items()):
            if p < m:
                self.vw[r] = (p + d, kind, extra)
        for r, p in list(self.sw.items()):
            if p < m:
                self.sw[r] = p + d
        for r, p in list(self.store_rd.items()):
            if p < m:
                self.store_rd[r] = p + d
        if self.m0w < m:
            self.m0w += d
        self.lines.append(f'{name}:')

    def wait(self, vm=None, lgkm=None):
        parts = []
        if vm is not None:
            parts.append(f'vmcnt({vm})')
        if lgkm is not None:
            parts.append(f'lgkmcnt({lgkm})')
        self.lines.append('    s_waitcnt ' + ' '.join(parts))
        self.pos += 1

    def barrier(self):
        self.lines.append('    s_barrier')
        self.pos += 1

    def text(self):
        return '\n'.join(self.lines) + '\n'
```

```python
from emit import Emitter, v, s, a
import os
X = set(os.environ.get('X', '').split(','))
STF = os.environ.get('STF', '')

WS_Q = 0
WS_K = 16 << 20
WS_V = 32 << 20
WS_CTX = 48 << 20
WS_H = 64 << 20
WS_HH = 66 << 20
WS_BYTES = 268435456

ARG = dict(x=0, ckv=8, wq=16, wuk=24, wuv=32, wo=40, bx=48, wg=56, wu=64, wd=72, out=80, dbg=88, ws=96)


class VAlloc:
    def __init__(self, start=1):
        self.n = start

    def get(self, cnt=1, align=1):
        self.n = (self.n + align - 1) // align * align
        r = self.n
        self.n += cnt
        return r


def kernel_header(E, name):
    E.raw('.text')
    E.raw(f'.globl {name}')
    E.raw('.p2align 8')
    E.raw(f'.type {name},@function')
    E.raw(f'{name}:')


def kernel_footer(E, name, nvgpr, nsgpr=102):
    nv = (nvgpr + 3) // 4 * 4
    E.raw('.section .rodata,"a"')
    E.raw('.p2align 6')
    E.raw(f'.amdhsa_kernel {name}')
    E.raw(f'  .amdhsa_next_free_vgpr {nv}')
    E.raw(f'  .amdhsa_next_free_sgpr {nsgpr}')
    E.raw(f'  .amdhsa_accum_offset {nv}')
    E.raw('  .amdhsa_group_segment_fixed_size 0')
    E.raw('  .amdhsa_kernarg_size 104')
    E.raw('  .amdhsa_user_sgpr_count 2')
    E.raw('  .amdhsa_user_sgpr_kernarg_segment_ptr 1')
    E.raw('  .amdhsa_system_sgpr_workgroup_id_x 1')
    E.raw('.end_amdhsa_kernel')


class SRDs:
    def __init__(self, E, sbase):
        self.E = E
        self.next = sbase
        self.req = []

    def want(self, arg, off, nbytes):
        r = self.next
        self.next += 4
        self.req.append((r, arg, off, nbytes))
        return r

    def build(self):
        E = self.E
        for r, arg, off, nbytes in self.req:
            E.I('s_load_dwordx2', s(r, 2), 's[0:1]', ARG[arg])
        E.wait(lgkm=0)
        for r, arg, off, nbytes in self.req:
            if off:
                E.I('s_add_u32', s(r), s(r), off)
                E.I('s_addc_u32', s(r + 1), s(r + 1), 0)
            E.I('s_and_b32', s(r + 1), s(r + 1), '0xffff')
            E.I('s_mov_b32', s(r + 2), nbytes)
            E.I('s_mov_b32', s(r + 3), '0x00020000')


def swz_a(RB):
    return (1, 7) if RB == 128 else (0, 15)


def gen_gemm(E, name, cfg):
    BM, BN, BK = cfg['BM'], cfg['BN'], cfg['BK']
    WM, WN, WK = cfg['WM'], cfg['WN'], cfg['WK']
    NST = cfg['NST']
    NW = WM * WN * WK
    jobs = cfg['jobs']
    regions = cfg['regions']
    assert sum(regions) == BN
    TM, TN = BM // WM // 32, BN // WN // 32
    assert TM == 2 and TN == 2
    STEPS = BK // 16 // WK
    RBA = BK * 2
    A_BYTES = BM * RBA
    reg_off = []
    o = A_BYTES
    for rw in regions:
        reg_off.append(o)
        o += BK * rw * 2
    STAGE_BYTES = o
    SCR = NST * STAGE_BYTES
    lds_total = SCR + NW * 512
    if cfg.get('red'):
        lds_total = max(lds_total, NW * 16384)
    cfg['lds'] = lds_total
    assert lds_total <= 163840

    kernel_header(E, name)
    V = VAlloc(1)
    sW, sT, sM0, sN0, sWG = 3, 4, 5, 6, 7
    sTmp = 8
    srd = SRDs(E, 12)
    for j in jobs:
        j['sA'] = srd.want(*j['A'])
        j['sW'] = [srd.want(*w) for w in j['W']]
        j['sO'] = srd.want(*j['O'])
        if 'R' in j:
            j['sR'] = srd.want(*j['R'])
    assert srd.next <= 100

    E.I('s_cmp_ge_u32', 's2', cfg['nwg'])
    Lend = f'{name}_end'
    E.branch('s_cbranch_scc1', Lend)
    cfg['tilemap'](E, sM0, sN0, sTmp)
    srd.build()

    vLane = V.get()
    vL31 = V.get()
    vHH = V.get()
    vT0, vT1, vT2, vT3 = V.get(), V.get(), V.get(), V.get()
    E.I('v_and_b32', v(vLane), 63, 'v0')
    E.I('v_lshrrev_b32', v(vT0), 6, 'v0')
    E.I('v_readfirstlane_b32', s(sW), v(vT0))
    E.I('v_and_b32', v(vL31), 31, 'v0')
    E.I('v_bfe_u32', v(vHH), 'v0', 5, 1)
    sWm, sWn, sWk = 96, 97, 98
    E.I('s_and_b32', s(sWn), s(sW), WN - 1)
    E.I('s_lshr_b32', s(sTmp), s(sW), {1: 0, 2: 1, 4: 2}[WN])
    E.I('s_and_b32', s(sWm), s(sTmp), WM - 1)
    E.I('s_lshr_b32', s(sWk), s(sTmp), {1: 0, 2: 1, 4: 2, 8: 3}[WM])
    E.I('s_lshl_b32', s(sWG), s(sW), 10)

    RA = 1024 // RBA
    CPR_A = RBA // 16
    NA = BM // RA // NW
    assert NA * RA * NW == BM
    lda_set = sorted(set(j['lda'] for j in jobs))
    vAoff = {}
    sh, mk = swz_a(RBA)
    for lda in lda_set:
        r = V.get()
        vAoff[lda] = r
        E.I('v_lshrrev_b32', v(vT0), CPR_A.bit_length() - 1, v(vLane))
        E.I('s_mul_i32', s(sTmp), s(sW), RA)
        E.I('v_add_u32', v(vT0), s(sTmp), v(vT0))
        E.I('v_lshrrev_b32', v(vT1), sh, v(vT0))
        E.I('v_and_b32', v(vT1), mk, v(vT1))
        E.I('v_and_b32', v(vT2), CPR_A - 1, v(vLane))
        E.I('v_xor_b32', v(vT1), v(vT1), v(vT2))
        if lda < 0:
            assert BK * 64 == NW * 1024
            E.I('v_lshlrev_b32', v(vT2), 4, v(vLane))
            E.I('s_lshr_b32', s(sTmp), s(sM0), 5)
            E.I('s_mul_i32', s(sTmp), s(sTmp), -lda)
            E.I('s_add_u32', s(sTmp), s(sTmp), s(sWG))
            E.I('v_add_u32', v(r), s(sTmp), v(vT2))
            continue
        E.I('v_lshlrev_b32', v(vT1), 4, v(vT1))
        E.I('v_add_u32', v(vT0), s(sM0), v(vT0))
        E.I('s_mov_b32', s(sTmp), lda)
        E.I('v_mul_lo_u32', v(vT0), v(vT0), s(sTmp))
        E.I('v_add_u32', v(r), v(vT0), v(vT1))
    vWoff = {}
    NWD = []
    for ri, rw in enumerate(regions):
        RBW = rw * 2
        RW_ = 1024 // RBW
        CPR_W = RBW // 16
        n = BK // RW_ // NW
        assert n * RW_ * NW == BK
        NWD.append(n)
        for ldw in sorted(set(j['ldw'] for j in jobs)):
            r = V.get()
            vWoff[(ri, ldw)] = r
            E.I('v_lshrrev_b32', v(vT0), CPR_W.bit_length() - 1, v(vLane))
            if RBW == 256:
                E.I('v_and_b32', v(vT1), 3, v(vT0))
            else:
                E.I('v_bfe_u32', v(vT1), v(vT0), 1, 1)
            E.I('v_lshlrev_b32', v(vT1), 2, v(vT1))
            E.I('v_and_b32', v(vT2), CPR_W - 1, v(vLane))
            E.I('v_xor_b32', v(vT1), v(vT1), v(vT2))
            E.I('v_lshlrev_b32', v(vT1), 4, v(vT1))
            E.I('s_mul_i32', s(sTmp), s(sW), RW_)
            E.I('v_add_u32', v(vT0), s(sTmp), v(vT0))
            E.I('s_mov_b32', s(sTmp), ldw)
            E.I('v_mul_lo_u32', v(vT0), v(vT0), s(sTmp))
            E.I('v_add_u32', v(vT0), v(vT0), v(vT1))
            E.I('s_lshl_b32', s(sTmp), s(sN0), 1)
            E.I('v_add_u32', v(r), s(sTmp), v(vT0))

    PERMW = any(j.get('ln') for j in jobs)
    vXa = [[V.get() for _ in range(TM)] for _ in range(STEPS)]
    E.I('s_lshl_b32', s(sTmp), s(sWm), 6)
    E.I('v_add_u32', v(vT0), s(sTmp), v(vL31))
    E.I('v_lshrrev_b32', v(vT1), sh, v(vT0))
    E.I('v_and_b32', v(vT1), mk, v(vT1))
    E.I('v_mul_u32_u24', v(vT0), RBA, v(vT0))
    LINA = lda_set[0] < 0
    for ks in range(STEPS):
        if LINA:
            assert not PERMW and WM == 1
            E.I('s_mul_i32', s(sTmp), s(sWk), STEPS * 1024)
            E.I('v_lshlrev_b32', v(vT3), 4, v(vLane))
            for sl in range(TM):
                E.I('s_add_u32', s(sTmp + 1), s(sTmp), ks * 1024 + sl * BK * 64)
                E.I('v_add_u32', v(vXa[ks][sl]), s(sTmp + 1), v(vT3))
            continue
        if PERMW:
            E.I('s_xor_b32', s(sTmp + 1), s(sWm), ks)
        else:
            E.I('s_mov_b32', s(sTmp + 1), ks)
        E.I('s_mul_i32', s(sTmp), s(sWk), STEPS)
        E.I('s_add_u32', s(sTmp), s(sTmp), s(sTmp + 1))
        E.I('s_lshl_b32', s(sTmp), s(sTmp), 1)
        E.I('v_add_u32', v(vT3), s(sTmp), v(vHH))
        E.I('v_xor_b32', v(vT3), v(vT3), v(vT1))
        E.I('v_lshl_add_u32', v(vT3), v(vT3), 4, v(vT0))
        for sl in range(TM):
            if PERMW:
                E.I('s_xor_b32', s(sTmp), s(sWn), sl)
            else:
                E.I('s_mov_b32', s(sTmp), sl)
            E.I('s_mul_i32', s(sTmp), s(sTmp), 32 * RBA)
            E.I('v_add_u32', v(vXa[ks][sl]), s(sTmp), v(vT3))
    perms = sorted(set(bool(j.get('perm')) for j in jobs))
    vWa = {}
    fr = cfg['frag']
    for pm in perms:
        for jn in range(TN):
            ri, cm, cc = fr(jn)
            RBW = regions[ri] * 2
            E.I('v_bfe_u32', v(vT0), v(vLane), 2, 2)
            E.I('v_lshrrev_b32', v(vT1), 5, v(vLane))
            E.I('v_lshlrev_b32', v(vT1), 2 if pm else 3, v(vT1))
            E.I('v_add_u32', v(vT1), v(vT1), v(vT0))
            E.I('s_mul_i32', s(sTmp), s(sWk), 16 * STEPS)
            E.I('v_add_u32', v(vT1), s(sTmp), v(vT1))
            E.I('v_mul_u32_u24', v(vT1), RBW, v(vT1))
            E.I('v_bfe_u32', v(vT2), v(vLane), 4, 1)
            E.I('v_lshlrev_b32', v(vT2), 4, v(vT2))
            E.I('v_and_b32', v(vT3), 3, v(vLane))
            E.I('v_lshl_add_u32', v(vT2), v(vT3), 2, v(vT2))
            E.I('s_mul_i32', s(sTmp), s(sWn), cm)
            E.I('s_add_u32', s(sTmp), s(sTmp), cc)
            E.I('v_add_u32', v(vT2), s(sTmp), v(vT2))
            E.I('v_lshlrev_b32', v(vT2), 1, v(vT2))
            if RBW == 256:
                E.I('v_lshlrev_b32', v(vT3), 6, v(vT0))
            else:
                E.I('v_bfe_u32', v(vT3), v(vT0), 1, 1)
                E.I('v_lshlrev_b32', v(vT3), 6, v(vT3))
            E.I('v_xor_b32', v(vT2), v(vT2), v(vT3))
            E.I('v_add_u32', v(vT1), v(vT1), v(vT2))
            for ks in range(STEPS):
                r = V.get()
                vWa[(pm, jn, ks)] = r
                if PERMW:
                    E.I('s_xor_b32', s(sTmp), s(sWm), ks)
                else:
                    E.I('s_mov_b32', s(sTmp), ks)
                E.I('s_mul_i32', s(sTmp), s(sTmp), 16 * RBW)
                E.I('s_add_u32', s(sTmp), s(sTmp), reg_off[ri])
                E.I('v_add_u32', v(r), s(sTmp), v(vT1))

    vStamp = V.get()
    nst = [0]

    def stamp():
        if 'stamp' not in X:
            return
        E.I('s_memtime', 's[100:101]')
        E.wait(lgkm=0)
        E.I('v_writelane_b32', v(vStamp), 's100', nst[0])
        nst[0] += 1
    stamp()
    acc = V.get(64, 4)
    fX = [[V.get(4, 4) for _ in range(TM)] for _ in range(2)]
    fW = [[V.get(4, 4) for _ in range(TN)] for _ in range(2)]
    fS = V.get(8, 4)
    anyln = any(j.get('ln') for j in jobs)
    if anyln:
        vS1 = [V.get() for _ in range(TM)]
        vS2 = [V.get() for _ in range(TM)]
        vCS = [V.get() for _ in range(TN)]
        vOnes = V.get()
        vX1 = [V.get() for _ in range(4)]
        vX2 = [V.get() for _ in range(4)]
        vXC = [[V.get() for _ in range(4)] for _ in range(TN)]
        E.I('v_mov_b32', v(vOnes), '0x3f803f80')
    cfg['V'] = V

    def A(i, jn):
        return acc + (i * TN + jn) * 16

    stages = []
    for ji, j in enumerate(jobs):
        for k0 in range(0, j['K'], BK):
            stages.append((ji, k0))
    vm = dict(n=0)
    last_dma = {}

    dmaq = []

    def issue_dma(st, now=False):
        if 'nodma' in X:
            last_dma[st] = vm['n']
            return
        ji, k0 = stages[st]
        j = jobs[ji]
        base = (st % NST) * STAGE_BYTES
        groups = []
        for t in range(NA):
            if j['lda'] < 0:
                go_ = k0 * 64 + t * (-j['lda'])
            else:
                go_ = k0 * 2 + t * NW * RA * j['lda']
            groups.append((base + t * NW * 1024, go_, vAoff[j['lda']], j['sA']))
        for ri, rw in enumerate(regions):
            RW_ = 1024 // (rw * 2)
            for t in range(NWD[ri]):
                groups.append((base + reg_off[ri] + t * NW * 1024, (k0 + t * NW * RW_) * j['ldw'],
                               vWoff[(ri, j['ldw'])], j['sW'][ri]))
        for n, g in enumerate(groups):
            def go(g=g, lastone=(n == len(groups) - 1)):
                E.I('s_add_u32', 'm0', s(sWG), g[0])
                E.I('s_mov_b32', s(sT), g[1])
                E.I('buffer_load_dwordx4', v(g[2]), s(g[3], 4), s(sT), mods='offen lds')
                vm['n'] += 1
                if lastone:
                    last_dma[st] = vm['n']
            if now:
                go()
            else:
                dmaq.append(go)

    addr_regs = [r for x in vXa for r in x] + list(vWa.values())
    cur_slot = [0]

    def set_slot(slot):
        d = (slot - cur_slot[0]) * STAGE_BYTES
        if d:
            for r in addr_regs:
                if d > 0:
                    E.I('v_add_u32', v(r), d, v(r))
                else:
                    E.I('v_subrev_u32', v(r), -d, v(r))
        cur_slot[0] = slot

    def read_frags(j, ks, setid):
        if 'noread' in X:
            return
        pm = bool(j.get('perm'))
        for i in range(TM):
            E.I('ds_read_b128', v(fX[setid][i], 4), v(vXa[ks][i]))
        for jn in range(TN):
            RBW = regions[fr(jn)[0]] * 2
            for hf in range(2):
                koff = 8 * hf if pm else 4 * hf
                E.I('ds_read_b64_tr_b16', v(fW[setid][jn] + 2 * hf, 2), v(vWa[(pm, jn, ks)]), mods=f'offset:{koff * RBW}')

    for st in range(min(NST, len(stages))):
        issue_dma(st, now=True)

    def stage_sync(st):
        while dmaq:
            dmaq.pop(0)()
        if 'nowait' in X:
            E.wait(vm=int(os.environ.get('VMW', '24')))
        else:
            E.wait(vm=min(63, vm['n'] - last_dma[st]), lgkm=0)
            E.barrier()
        if st >= 1 and st + NST - 1 < len(stages):
            issue_dma(st + NST - 1)
        set_slot(st % NST)

    pending = []
    stage_sync(0)
    setid = 0
    read_frags(jobs[stages[0][0]], 0, setid)
    for st, (ji, k0) in enumerate(stages):
        j = jobs[ji]
        first = (k0 == 0)
        lastk = (k0 + BK >= j['K'])
        stamp()
        if first and j.get('ln'):
            for r in vX1 + vX2 + vXC[0] + vXC[1]:
                E.I('v_mov_b32', v(r), 0)
        for ks in range(STEPS):
            cur = setid
            setid ^= 1
            if ks + 1 < STEPS:
                read_frags(j, ks + 1, setid)
                E.wait(lgkm=TM + 2 * TN)
            elif st + 1 < len(stages):
                stage_sync(st + 1)
                read_frags(jobs[stages[st + 1][0]], 0, setid)
            else:
                E.wait(lgkm=0)
            lnq = []
            if j.get('ln') and 'noln' not in X:
                for q in range(4):
                    x = fX[cur][0] + q
                    lnq.append(('v_lshlrev_b32', v(vT0), 16, v(x)))
                    lnq.append(('v_and_b32', v(vT1), '0xffff0000', v(x)))
                    lnq.append(('v_add_f32', v(vX1[q & 1]), v(vX1[q & 1]), v(vT0)))
                    lnq.append(('v_add_f32', v(vX1[2 + (q & 1)]), v(vX1[2 + (q & 1)]), v(vT1)))
                    lnq.append(('v_fma_f32', v(vX2[q & 1]), v(vT0), v(vT0), v(vX2[q & 1])))
                    lnq.append(('v_fma_f32', v(vX2[2 + (q & 1)]), v(vT1), v(vT1), v(vX2[2 + (q & 1)])))
                if ks == 0:
                    for q in range(4):
                        for jj in range(TN):
                            x = fW[cur][jj] + q
                            lnq.append(('v_lshlrev_b32', v(vT2), 16, v(x)))
                            lnq.append(('v_and_b32', v(vT3), '0xffff0000', v(x)))
                            lnq.append(('v_add_f32', v(vXC[jj][q & 1]), v(vXC[jj][q & 1]), v(vT2)))
                            lnq.append(('v_add_f32', v(vXC[jj][2 + (q & 1)]), v(vXC[jj][2 + (q & 1)]), v(vT3)))
            per = (len(lnq) + 3) // 4
            for i in range(TM):
                for jn in range(TN):
                    c = 0 if (first and ks == 0) else v(A(i, jn), 16)
                    if 'nomfma' in X and not (first and ks == 0):
                        pass
                    elif j.get('swap', True):
                        E.I('v_mfma_f32_32x32x16_bf16', v(A(i, jn), 16), v(fW[cur][jn], 4), v(fX[cur][i], 4), c)
                    else:
                        E.I('v_mfma_f32_32x32x16_bf16', v(A(i, jn), 16), v(fX[cur][i], 4), v(fW[cur][jn], 4), c)
                    if dmaq:
                        dmaq.pop(0)()
                    elif pending:
                        pending.pop(0)()
                    for _ in range(per):
                        if lnq:
                            E.I(*lnq.pop(0))
        if lastk:
            env = dict(E=E, V=V, j=j, A=A, vL31=vL31, vHH=vHH, vLane=vLane, sWm=sWm, sWn=sWn, sWk=sWk, sW=sW,
                       sM0=sM0, sN0=sN0, sTmp=sTmp, sT=sT, vT=[vT0, vT1, vT2, vT3], fS=fS, vm=vm,
                       SCR=SCR, NW=NW, TM=TM, TN=TN, PERMW=PERMW, pending=pending, defer=(st + 1 < len(stages) and 'nodefer' not in X))
            if j.get('ln'):
                env.update(vS1=vS1, vS2=vS2, vCS=vCS)
                for dst, src in ((vS1[0], vX1), (vS2[0], vX2), (vCS[0], vXC[0]), (vCS[1], vXC[1])):
                    E.I('v_add_f32', v(src[0]), v(src[0]), v(src[1]))
                    E.I('v_add_f32', v(src[2]), v(src[2]), v(src[3]))
                    E.I('v_add_f32', v(dst), v(src[0]), v(src[2]))
            stamp()
            j['epi'](env)
            stamp()
    if 'stamp' in X:
        E.wait(vm=0)
        stamp()
        E.I('s_load_dwordx2', 's[96:97]', 's[0:1]', ARG['ws'])
        E.wait(lgkm=0)
        E.I('s_add_u32', 's96', 's96', 128 << 20)
        E.I('s_addc_u32', 's97', 's97', 0)
        E.I('s_and_b32', 's97', 's97', '0xffff')
        E.I('s_mov_b32', 's98', 1 << 20)
        E.I('s_mov_b32', 's99', '0x00020000')
        E.I('v_lshlrev_b32', v(vT0), 2, 'v0')
        E.I('s_lshl_b32', s(sTmp), 's2', 11)
        E.I('v_add_u32', v(vT0), s(sTmp), v(vT0))
        E.I('buffer_store_dword', v(vStamp), v(vT0), 's[96:99]', 0, mods='offen')

    E.label(Lend)
    E.I('s_endpgm')
    kernel_footer(E, name, V.n)
    return lds_total


def half_sum(E, r, tmp):
    E.I('v_mov_b32', v(tmp), v(r))
    E.I('v_permlane32_swap_b32', v(r), v(tmp))
    E.I('v_add_f32', v(r), v(r), v(tmp))


def ln_prepare(env):
    E, V = env['E'], env['V']
    vS1, vS2, vCS = env['vS1'], env['vS2'], env['vCS']
    t0, t1, t2 = env['vT'][0], env['vT'][1], env['vT'][2]
    sT = env['sTmp']
    SCR = env['SCR']
    half_sum(E, vS1[0], t0)
    half_sum(E, vS2[0], t0)
    for jn in range(env['TN']):
        half_sum(E, vCS[jn], t0)
    E.I('s_lshl_b32', s(sT), s(env['sW']), 9)
    E.I('s_add_u32', s(sT), s(sT), SCR)
    E.I('v_lshlrev_b32', v(t1), 2, v(env['vL31']))
    E.I('v_add_u32', v(t2), s(sT), v(t1))
    E.I('ds_write_b32', v(t2), v(vS1[0]))
    E.I('ds_write_b32', v(t2), v(vS2[0]), mods='offset:128')
    for jn in range(env['TN']):
        E.I('ds_write_b32', v(t2), v(vCS[jn]), mods=f'offset:{256 + 128 * jn}')
    E.wait(lgkm=0)
    E.barrier()
    E.I('s_lshl_b32', s(sT), s(env['sWm']), 10)
    E.I('s_add_u32', s(sT), s(sT), SCR)
    E.I('v_add_u32', v(t2), s(sT), v(t1))
    t3 = env['vT'][3]
    slot_addr(env, t2, t3, 512)
    for i in range(env['TM']):
        E.I('ds_read_b32', v(vS1[i]), v((t2, t3)[i]))
        E.I('ds_read_b32', v(vS2[i]), v((t2, t3)[i]), mods='offset:128')
    if 'vCSx' not in env['j']:
        env['j']['vCSx'] = V.get(64, 4)
    cs = env['j']['vCSx']
    E.I('s_lshl_b32', s(sT), s(env['sWn']), 9)
    E.I('s_add_u32', s(sT), s(sT), SCR + 256)
    E.I('v_lshlrev_b32', v(t1), 4, v(env['vHH']))
    E.I('v_add_u32', v(t1), s(sT), v(t1))
    for wm in range(4):
        dst = cs + (32 if wm else 0)
        for jn in range(env['TN']):
            for q in range(4):
                E.I('ds_read_b128', v(dst + 16 * jn + 4 * q, 4), v(t1), mods=f'offset:{1024 * wm + 128 * jn + 32 * q}')
        if wm:
            E.wait(lgkm=0)
            for r in range(32):
                E.I('v_add_f32', v(cs + r), v(cs + r), v(cs + 32 + r))
    for i in range(env['TM']):
        E.I('v_mul_f32', v(vS1[i]), '0x3b000000', v(vS1[i]))
        E.I('v_mul_f32', v(vS2[i]), '0x3b000000', v(vS2[i]))
        E.I('v_fma_f32', v(vS2[i]), f'-{v(vS1[i])}', v(vS1[i]), v(vS2[i]))
        E.I('v_max_f32', v(vS2[i]), 0, v(vS2[i]))
        E.I('v_add_f32', v(vS2[i]), '0x3727c5ac', v(vS2[i]))
        E.I('v_rsq_f32', v(vS2[i]), v(vS2[i]))
        E.I('v_mul_f32', v(vS1[i]), v(vS1[i]), v(vS2[i]))
        E.I('v_sub_f32', v(vS1[i]), 0, v(vS1[i]))
    return vS2, vS1, cs


def ln_apply(env, vR, vMR, cs):
    E, A = env['E'], env['A']
    for i in range(env['TM']):
        for jn in range(env['TN']):
            for r in range(16):
                E.I('v_mul_f32', v(A(i, jn) + r), v(A(i, jn) + r), v(vR[i]))
                E.I('v_fma_f32', v(A(i, jn) + r), v(vMR[i]), v(cs + 16 * jn + r), v(A(i, jn) + r))


def pack_store(env, base_reg, vaddr, soff, off, srd, slot=None):
    E, V = env['E'], env['V']
    if env['defer']:
        if 'pk' not in env['vm']:
            env['vm']['pk'] = V.get(32, 4)
            env['vm']['pa'] = V.get(4)
        n = env.setdefault('npk', 0)
        f = env['vm']['pk'] + 8 * n
        env['npk'] = n + 1
        pa = env['vm']['pa'] + (slot if slot is not None else (0 if vaddr == env['vT'][0] else 1))
        E.I('v_mov_b32', v(pa), v(vaddr))
        vaddr = pa
    else:
        f = env['fS']
    for u in range(2):
        for d in range(4):
            E.I('v_cvt_pk_bf16_f32', v(f + 4 * u + d), v(base_reg + 8 * u + 2 * d), v(base_reg + 8 * u + 2 * d + 1))
    for u in range(2):
        if 'nostore' in X:
            continue

        def st(u=u, f=f, vaddr=vaddr):
            E.I('buffer_store_dwordx4', v(f + 4 * u, 4), v(vaddr), s(srd, 4), soff, mods=f'offen offset:{off + 1024 * u} {STF}')
            env['vm']['n'] += 1
        if env['defer']:
            env['pending'].append(st)
        else:
            st()


def lane_part(env, t0):
    E = env['E']
    E.I('v_lshlrev_b32', v(t0), 4, v(env['vLane']))


def slot_addr(env, t0, t1, delta):
    E = env['E']
    sT = env['sTmp']
    if env['PERMW']:
        E.I('s_mul_i32', s(sT), s(env['sWn']), delta)
        E.I('s_sub_u32', s(sT + 1), delta, s(sT))
        E.I('v_add_u32', v(t1), s(sT + 1), v(t0))
        E.I('v_add_u32', v(t0), s(sT), v(t0))
    else:
        E.I('v_add_u32', v(t1), delta, v(t0))


def epi_qk(env):
    E, j, A = env['E'], env['j'], env['A']
    if j.get('ln'):
        vR, vMR, cs = ln_prepare(env)
        for i in range(2):
            E.I('v_mul_f32', v(vR[i]), '0x3e0293ee', v(vR[i]))
            E.I('v_mul_f32', v(vMR[i]), '0x3e0293ee', v(vMR[i]))
        ln_apply(env, vR, vMR, cs)
    t0, t1 = env['vT'][0], env['vT'][1]
    sT = env['sTmp']
    lane_part(env, t0)
    E.I('s_lshl_b32', s(sT), s(env['sWm']), 6)
    E.I('s_add_u32', s(sT), s(sT), s(env['sM0']))
    E.I('s_lshl_b32', s(sT), s(sT), 8)
    E.I('s_lshl_b32', s(sT + 1), s(env['sN0']), 12)
    E.I('s_add_u32', s(sT), s(sT), s(sT + 1))
    E.I('s_lshl_b32', s(sT + 1), s(env['sWn']), 12)
    E.I('s_add_u32', s(sT), s(sT), s(sT + 1))
    E.I('v_add_u32', v(t0), s(sT), v(t0))
    slot_addr(env, t0, t1, 8192)
    for i in range(2):
        for jn in range(2):
            pack_store(env, A(i, jn), (t0, t1)[i], 0, 2048 * jn, j['sO'])


def epi_v(env):
    E, j, A = env['E'], env['j'], env['A']
    t0, t1 = env['vT'][0], env['vT'][1]
    sT = env['sTmp']
    lane_part(env, t0)
    E.I('s_lshl_b32', s(sT), s(env['sN0']), 12)
    E.I('s_lshl_b32', s(sT + 1), s(env['sWm']), 6)
    E.I('s_add_u32', s(sT + 1), s(sT + 1), s(env['sM0']))
    E.I('s_lshl_b32', s(sT + 1), s(sT + 1), 6)
    E.I('s_add_u32', s(sT), s(sT), s(sT + 1))
    E.I('s_lshl_b32', s(sT + 1), s(env['sWn']), 18)
    E.I('s_add_u32', s(sT), s(sT), s(sT + 1))
    E.I('v_add_u32', v(t0), s(sT), v(t0))
    t2 = env['vT'][2]
    slot_addr(env, t0, t2, 2048)
    for jn in range(2):
        if jn:
            E.I('v_add_u32', v(t0), 131072, v(t0))
            E.I('v_add_u32', v(t2), 131072, v(t2))
        for i in range(2):
            pack_store(env, A(i, jn), (t0, t2)[i], 0, 0, j['sO'], slot=2 * jn + i)


def epi_glu(env):
    E, j, A = env['E'], env['j'], env['A']
    vR, vMR, cs = ln_prepare(env)
    ln_apply(env, vR, vMR, cs)
    t0, t1 = env['vT'][0], env['vT'][1]
    sT = env['sTmp']
    for i in range(2):
        for r in range(16):
            g, u = A(i, 0) + r, A(i, 1) + r
            E.I('v_mul_f32', v(g), '0xbfb8aa3b', v(g))
            E.I('v_exp_f32', v(g), v(g))
            E.I('v_add_f32', v(g), 1.0, v(g))
            E.I('v_rcp_f32', v(g), v(g))
            E.I('v_mul_f32', v(g), v(g), v(u))
    lane_part(env, t0)
    E.I('s_lshl_b32', s(sT), s(env['sWm']), 6)
    E.I('s_add_u32', s(sT), s(sT), s(env['sM0']))
    E.I('s_mul_i32', s(sT), s(sT), 3584)
    E.I('s_lshl_b32', s(sT + 1), s(env['sWn']), 5)
    E.I('s_add_u32', s(sT + 1), s(sT + 1), s(env['sN0']))
    E.I('s_lshl_b32', s(sT + 1), s(sT + 1), 6)
    E.I('s_add_u32', s(sT), s(sT), s(sT + 1))
    E.I('v_add_u32', v(t0), s(sT), v(t0))
    slot_addr(env, t0, t1, 32 * 3584)
    for i in range(2):
        pack_store(env, A(i, 0), (t0, t1)[i], 0, 0, j['sO'])


def epi_red(env):
    E, j, A, V = env['E'], env['j'], env['A'], env['V']
    NW = env['NW']
    t0, t1, t2 = env['vT'][0], env['vT'][1], env['vT'][2]
    sT = env['sTmp']
    acc = A(0, 0)
    QPW = 16 // NW
    res = V.get(2 * QPW, 2)
    E.I('v_add_u32', v(t2), s(env['sM0']), v(env['vL31']))
    E.I('v_lshlrev_b32', v(t2), 10, v(t2))
    E.I('v_lshl_add_u32', v(t2), v(env['vHH']), 3, v(t2))
    E.I('s_lshl_b32', s(sT), s(env['sN0']), 1)
    E.I('v_add_u32', v(t2), s(sT), v(t2))
    E.I('s_mul_i32', s(sT), s(env['sW']), QPW)
    E.I('s_lshr_b32', s(sT + 1), s(sT), 3)
    E.I('s_lshl_b32', s(sT + 1), s(sT + 1), 15)
    E.I('s_and_b32', s(sT + 2), s(sT), 7)
    E.I('s_lshl_b32', s(sT + 2), s(sT + 2), 4)
    E.I('s_add_u32', s(sT + 1), s(sT + 1), s(sT + 2))
    E.I('v_add_u32', v(t2), s(sT + 1), v(t2))
    for q in range(QPW):
        E.I('buffer_load_dwordx2', v(res + 2 * q, 2), v(t2), s(j['sR'], 4), 0, mods=f'offen offset:{16 * q}')
    E.wait(lgkm=0)
    E.barrier()
    E.I('v_lshlrev_b32', v(t0), 4, v(env['vLane']))
    E.I('s_lshl_b32', s(sT), s(env['sW']), 14)
    E.I('v_add_u32', v(t1), s(sT), v(t0))
    for q in range(16):
        E.I('ds_write_b128', v(t1), v(acc + 4 * q, 4), mods=f'offset:{1024 * q}')
    E.wait(lgkm=0)
    E.barrier()
    E.I('s_mul_i32', s(sT), s(env['sW']), 1024 * QPW)
    E.I('v_add_u32', v(t1), s(sT), v(t0))
    E.I('v_add_u32', v(t0), 65536, v(t1))
    for w in range(NW):
        for q in range(QPW):
            E.I('ds_read_b128', v(acc + (w * QPW + q) * 4, 4), v(t1 if w < 4 else t0),
                mods=f'offset:{(w % 4) * 16384 + 1024 * q}')
    E.wait(lgkm=0)
    for w in range(1, NW):
        for q in range(QPW):
            for r in range(4):
                E.I('v_add_f32', v(acc + q * 4 + r), v(acc + q * 4 + r), v(acc + (w * QPW + q) * 4 + r))
    E.wait(vm=0)
    for q in range(QPW):
        for d in range(2):
            x = res + 2 * q + d
            E.I('v_lshlrev_b32', v(t0), 16, v(x))
            E.I('v_and_b32', v(x), '0xffff0000', v(x))
            E.I('v_add_f32', v(acc + q * 4 + 2 * d), v(acc + q * 4 + 2 * d), v(t0))
            E.I('v_add_f32', v(acc + q * 4 + 2 * d + 1), v(acc + q * 4 + 2 * d + 1), v(x))
            E.I('v_cvt_pk_bf16_f32', v(x), v(acc + q * 4 + 2 * d), v(acc + q * 4 + 2 * d + 1))
        E.I('buffer_store_dwordx2', v(res + 2 * q, 2), v(t2), s(j['sO'], 4), 0, mods=f'offen offset:{16 * q} {STF}')


MB = 1 << 20


def cfg_k1():
    def tilemap(E, sM0, sN0, sT):
        E.I('s_and_b32', s(sN0), 's2', 31)
        E.I('s_lshl_b32', s(sN0), s(sN0), 7)
        E.I('s_lshr_b32', s(sM0), 's2', 5)
        E.I('s_lshl_b32', s(sM0), s(sM0), 8)
    jobs = [
        dict(A=('x', 0, 2 * MB), lda=1024, W=[('wq', 0, 4 * MB)], ldw=8192, K=512, O=('ws', WS_Q, 16 * MB),
             ln=True, swap=True, epi=epi_qk),
        dict(A=('ckv', 0, 2 * MB), lda=1024, W=[('wuk', 0, 4 * MB)], ldw=8192, K=512, O=('ws', WS_K, 16 * MB),
             swap=True, epi=epi_qk),
        dict(A=('ckv', 0, 2 * MB), lda=1024, W=[('wuv', 0, 4 * MB)], ldw=8192, K=512, O=('ws', WS_V, 16 * MB),
             swap=False, epi=epi_v),
    ]
    return dict(BM=256, BN=128, BK=64, WM=4, WN=2, WK=1, NST=3, regions=[128], jobs=jobs, nwg=256,
                frag=lambda jn: (0, 64, 32 * jn), tilemap=tilemap, grid=256, block=512)


def cfg_k4():
    def tilemap(E, sM0, sN0, sT):
        E.I('s_mul_hi_u32', s(sM0), 's2', 153391690)
        E.I('s_mul_i32', s(sT), s(sM0), 28)
        E.I('s_sub_u32', s(sN0), 's2', s(sT))
        E.I('s_lshl_b32', s(sN0), s(sN0), 6)
        E.I('s_lshl_b32', s(sM0), s(sM0), 8)
    WB = 512 * 1792 * 2
    jobs = [dict(A=('ws', WS_H, 2 * MB), lda=1024, W=[('wg', 0, WB), ('wu', 0, WB)], ldw=3584, K=512,
                 O=('ws', WS_HH, 2048 * 3584), ln=True, swap=True, epi=epi_glu)]
    return dict(BM=256, BN=128, BK=64, WM=4, WN=2, WK=1, NST=3, regions=[64, 64], jobs=jobs, nwg=224,
                frag=lambda jn: (jn, 32, 0), tilemap=tilemap, grid=224, block=512)


def cfg_red(which):
    def tilemap(E, sM0, sN0, sT):
        E.I('s_lshr_b32', s(sN0), 's2', 3)
        E.I('s_and_b32', s(sN0), s(sN0), 7)
        E.I('s_lshl_b32', s(sN0), s(sN0), 6)
        E.I('s_and_b32', s(sM0), 's2', 7)
        E.I('s_lshl_b32', s(sM0), s(sM0), 2)
        E.I('s_lshr_b32', s(sT), 's2', 6)
        E.I('s_add_u32', s(sM0), s(sM0), s(sT))
        E.I('s_lshl_b32', s(sM0), s(sM0), 6)
    if which == 3:
        jobs = [dict(A=('ws', WS_CTX, 16 * MB), lda=-262144, W=[('wo', 0, 4 * MB)], ldw=1024, K=4096, perm=True,
                     O=('ws', WS_H, 2 * MB), R=('x', 0, 2 * MB), swap=True, epi=epi_red)]
    else:
        jobs = [dict(A=('ws', WS_HH, 2048 * 3584), lda=-114688, W=[('wd', 0, 1792 * 1024)], ldw=1024, K=1792, perm=True,
                     O=('out', 0, 2 * MB), R=('ws', WS_H, 2 * MB), swap=True, epi=epi_red)]
    return dict(BM=64, BN=64, BK=128, WM=1, WN=1, WK=8, NST=4, regions=[64], jobs=jobs, nwg=256, red=True,
                frag=lambda jn: (0, 0, 32 * jn), tilemap=tilemap, grid=256, block=512)
```

```python
from emit import Emitter, v, s, a
from gemm import VAlloc, SRDs, kernel_header, kernel_footer, WS_Q, WS_K, WS_V, WS_CTX, MB, X, ARG, STF
import os

NEG_BIG = '0xf149f2ca'
THR = '0x41c00000'


def gen_attn(E, name):
    kernel_header(E, name)
    V = VAlloc(1)
    sW, sT, sHead, sP, sWG, sQg, sKh = 3, 4, 5, 6, 7, 8, 9
    sTmp = 10
    sKoff, sVoff = 60, 61
    sCnt, sBlk, sQ0 = 62, 63, 64
    sNext, sPar, s4k = 67, 68, 69
    srd = SRDs(E, 12)
    sQ = srd.want('ws', WS_Q, 16 * MB)
    sK = srd.want('ws', WS_K, 16 * MB)
    sV = srd.want('ws', WS_V, 16 * MB)
    sO = srd.want('ws', WS_CTX, 16 * MB)
    WB = 512 * 1792 * 2
    sPf = [srd.want('wo', 0, 4 * MB), srd.want('wg', 0, WB), srd.want('wu', 0, WB), srd.want('wd', 0, WB)]
    assert srd.next <= 40+8
    Lend = f'{name}_end'
    E.I('s_cmp_ge_u32', 's2', 256)
    E.branch('s_cbranch_scc1', Lend)
    E.I('s_and_b32', s(sHead), 's2', 31)
    E.I('s_lshr_b32', s(sP), 's2', 5)
    srd.build()
    vLane, vL31, vHH = V.get(), V.get(), V.get()
    t0, t1, t2, t3 = V.get(), V.get(), V.get(), V.get()
    E.I('v_and_b32', v(vLane), 63, 'v0')
    E.I('v_lshrrev_b32', v(t0), 6, 'v0')
    E.I('v_readfirstlane_b32', s(sW), v(t0))
    E.I('v_and_b32', v(vL31), 31, 'v0')
    E.I('v_bfe_u32', v(vHH), 'v0', 5, 1)
    E.I('s_and_b32', s(sQg), s(sW), 3)
    E.I('s_lshr_b32', s(sKh), s(sW), 2)
    E.I('s_lshl_b32', s(sWG), s(sW), 10)

    vKoff, vVoff = V.get(), V.get()
    E.I('v_lshlrev_b32', v(t0), 4, v(vLane))
    E.I('s_lshl_b32', s(sTmp), s(sHead), 19)
    E.I('s_add_u32', s(sTmp), s(sTmp), s(sWG))
    E.I('v_add_u32', v(vKoff), s(sTmp), v(t0))
    E.I('v_mov_b32', v(vVoff), v(vKoff))
    E.I('s_mov_b32', s(s4k), 4096)

    G = dict(grp=0)

    def dma_k(par):
        out = []
        for t in range(8 if G['grp'] == 0 else 0):
            def go(t=t):
                E.I('s_add_u32', 'm0', s(sWG), par * 32768 + t * 4096)
                E.I('s_add_u32', s(sT), s(sKoff), t * 4096)
                E.I('buffer_load_dwordx4', v(vKoff), s(sK, 4), s(sT), mods='offen lds')
            out.append(go)
        return out

    def dma_v(par):
        out = []
        for t in range(8 if G['grp'] == 0 else 0):
            def go(t=t):
                E.I('s_add_u32', 'm0', s(sWG), 65536 + par * 32768 + t * 4096)
                E.I('s_add_u32', s(sT), s(sVoff), (t >> 1) * 131072 + (t & 1) * 4096)
                E.I('buffer_load_dwordx4', v(vVoff), s(sV, 4), s(sT), mods='offen lds')
            out.append(go)
        return out

    E.I('s_mov_b32', s(sKoff), 0)
    E.I('s_mov_b32', s(sVoff), 0)
    Lnd = name + '_nodma0'
    E.I('s_cmp_ge_u32', s(sW), 4)
    E.branch('s_cbranch_scc1', Lnd)
    for g in dma_k(0):
        g()
    E.label(Lnd)

    vKa, vVa = V.get(), V.get()
    E.I('v_lshlrev_b32', v(t0), 4, v(vLane))
    E.I('s_lshl_b32', s(sTmp), s(sKh), 14)
    E.I('v_add_u32', v(vKa), s(sTmp), v(t0))
    E.I('s_lshl_b32', s(sTmp), s(sKh), 12)
    E.I('s_add_u32', s(sTmp), s(sTmp), 65536)
    E.I('v_add_u32', v(vVa), s(sTmp), v(t0))

    vQ = V.get(32, 4)
    vO = V.get(64, 4)
    vS = [V.get(32, 4), V.get(32, 4)]
    vNM = V.get(16, 4)
    NF = 8
    vF = V.get(4 * NF, 4)
    vM, vL, vL2, vThr, vFloor = V.get(), V.get(), V.get(), V.get(), V.get()
    vQa, vKey, vNB = V.get(), V.get(), V.get()
    vMx = V.get()
    E.I('v_mov_b32', v(vNB), NEG_BIG)
    vStamp = V.get()
    E.I('s_mov_b32', 's99', 0)

    def stamp():
        if 'stamp' not in X:
            return
        E.I('s_memtime', 's[100:101]')
        E.wait(lgkm=0)
        E.I('s_and_b32', 'm0', 's99', 63)
        E.nop(2)
        E.I('v_writelane_b32', v(vStamp), 's100', 'm0')
        E.I('s_add_u32', 's99', 's99', 1)
    stamp()
    if 'stamp' in X:
        E.I('s_memrealtime', 's[94:95]')
        E.I('s_memtime', 's[92:93]')
        E.wait(lgkm=0)
    PRE = NF - 1
    FL = int(os.environ.get('FL', '16'))

    def phase(seq, rd, mf, fillers, per):
        for n in range(PRE):
            rd(n)
        tot = len(fillers)
        pos = {getattr(f, 'tag', None): i + 1 for i, f in enumerate(fillers)}
        emitted = [0]

        def upto(k):
            while emitted[0] < k:
                fillers[emitted[0]]()
                emitted[0] += 1
        head = min(tot, per)
        upto(head)
        rest = tot - head
        for n in range(len(seq)):
            if n + PRE < len(seq):
                rd(n + PRE)
            if len(seq[n]) > 2 and seq[n][2] in pos:
                upto(pos[seq[n][2]])
            if 'flip' in X and len(seq) == 32 and n % FL == 0:
                E.I('s_setprio', ((n // FL) + G['grp']) & 1)
            if 'w2' in X:
                if n % 2 == 0:
                    E.wait(lgkm=max(0, min(PRE - 1, len(seq) - 2 - n)))
            else:
                E.wait(lgkm=min(PRE, len(seq) - 1 - n))
            mf(n)
            upto(head + (rest * (n + 1) + len(seq) - 1) // len(seq))

    def qk_items(kpar, sb):
        out = []
        for sub in range(2):
            for t in range(8):
                def rd(f, sub=sub, t=t):
                    E.I('ds_read_b128', v(f, 4), v(vKa), mods=f'offset:{kpar * 32768 + sub * 8192 + t * 1024}')

                def mf(f, sub=sub, t=t):
                    c = v(vNM, 16) if t == 0 else v(vS[sb] + 16 * sub, 16)
                    E.I('v_mfma_f32_32x32x16_bf16', v(vS[sb] + 16 * sub, 16), v(f, 4), v(vQ + 4 * t, 4), c)
                out.append((rd, mf))
        return out

    def pv_items(vpar, sb):
        out = []
        for u in range(4):
            for dt in range(4):
                def rd(f, u=u, dt=dt):
                    E.I('ds_read_b128', v(f, 4), v(vVa), mods=f'offset:{vpar * 32768 + dt * 8192 + u * 1024}')

                def mf(f, u=u, dt=dt):
                    E.I('v_mfma_f32_32x32x16_bf16', v(vO + 16 * dt, 16), v(f, 4), v(vS[sb] + 8 * u, 4),
                        v(vO + 16 * dt, 16))
                out.append((rd, mf, ('p', u)))
        return out

    def run_items(items, fillers, per):
        phase(items, lambda n: items[n][0](vF + 4 * (n % NF)), lambda n: items[n][1](vF + 4 * (n % NF)), fillers, per)

    def qk_phase(kpar, sb, fillers, per):
        run_items(qk_items(kpar, sb), fillers, per)

    def pv_phase(vpar, sb, fillers, per):
        run_items(pv_items(vpar, sb), fillers, per)

    def F(op, *ops):
        return lambda: E.I(op, *ops)

    def soft_b(sb, groups=(0, 1, 2, 3)):
        S = vS[sb]
        out = []
        for g in groups:
            for r in range(8):
                out.append(F('v_exp_f32', v(S + 8 * g + r), v(S + 8 * g + r)))
            for d in range(4):
                a0, a1 = S + 8 * g + 2 * d, S + 8 * g + 2 * d + 1
                out.append(F('v_add_f32', v(vL), v(vL), v(a0)))
                out.append(F('v_add_f32', v(vL2), v(vL2), v(a1)))
                out.append(F('v_cvt_pk_bf16_f32', v(S + 8 * g + d), v(a0), v(a1)))
            out[-1].tag = ('p', g)
        return out

    def soft_a(sb, masked):
        S = vS[sb]
        out = []
        if masked:
            for sub in range(2):
                for r in range(16):
                    kk = 32 * sub + (r & 3) + 8 * (r >> 2)
                    out.append(F('v_cmp_ge_i32', 'vcc', v(vKey), kk))
                    out.append(F('v_cndmask_b32', v(S + 16 * sub + r), v(vNB), v(S + 16 * sub + r), 'vcc'))
        out.append(F('v_max3_f32', v(t0), v(S), v(S + 1), v(S + 2)))
        out.append(F('v_max3_f32', v(t1), v(S + 3), v(S + 4), v(S + 5)))
        for r in range(6, 30, 4):
            out.append(F('v_max3_f32', v(t0), v(t0), v(S + r), v(S + r + 1)))
            out.append(F('v_max3_f32', v(t1), v(t1), v(S + r + 2), v(S + r + 3)))
        out.append(F('v_max3_f32', v(t0), v(t0), v(S + 30), v(S + 31)))
        out.append(F('v_max_f32', v(t0), v(t0), v(t1)))
        out.append(F('v_mov_b32', v(t1), v(t0)))
        out.append(F('v_permlane32_swap_b32', v(t0), v(t1)))
        out.append(F('v_max_f32', v(vMx), v(t0), v(t1)))
        return out

    def check(sb):
        S = vS[sb]
        Lskip = E.newlabel(f'{name}_keep')
        E.I('v_cmp_gt_f32', 'vcc', v(vMx), v(vThr))
        E.branch('s_cbranch_vccz', Lskip)
        E.I('v_max_f32', v(t0), v(vMx), v(vFloor))
        E.I('v_sub_f32', v(t1), 0, v(t0))
        E.I('v_exp_f32', v(t1), v(t1))
        E.I('v_add_f32', v(vM), v(vM), v(t0))
        E.I('v_mov_b32', v(vThr), THR)
        E.I('v_mov_b32', v(vFloor), 0)
        for r in range(16):
            E.I('v_sub_f32', v(vNM + r), 0, v(vM))
        for r in range(32):
            E.I('v_sub_f32', v(S + r), v(S + r), v(t0))
        E.I('v_min_f32', v(t1), 1.0, v(t1))
        E.I('v_mul_f32', v(vL), v(vL), v(t1))
        E.I('v_mul_f32', v(vL2), v(vL2), v(t1))
        for r in range(64):
            E.I('v_mul_f32', v(vO + r), v(vO + r), v(t1))
        E.label(Lskip)

    sPfS, sPfO, sPfE = 72, 76, 77
    vPf = V.get()

    def prefetch_setup():
        E.I('v_lshlrev_b32', v(vPf), 4, v(vLane))
        for w in range(4):
            Lw = E.newlabel(f'{name}_pfw')
            if w:
                E.I('s_cmp_lg_u32', s(sW), 4 + w)
                E.branch('s_cbranch_scc1', Lw)
            n = 16 if w == 0 else 7
            for i in range(4):
                E.I('s_mov_b32', s(sPfS + i), s(sPf[w] + i))
            E.I('s_mul_i32', s(sPfO), 's2', n * 1024)
            E.I('s_add_u32', s(sPfE), s(sPfO), (n - 1) * 1024)
            if w:
                E.label(Lw)

    def pf_items():
        def go():
            E.I('s_mov_b32', 'm0', 139264)
            E.I('s_min_u32', s(sT), s(sPfO), s(sPfE))
            E.I('s_add_u32', s(sPfO), s(sPfO), 1024)
            E.I('buffer_load_dwordx4', v(vPf), s(sPfS, 4), s(sT), mods='offen lds')
        return [go, go] if (G['grp'] == 1 and 'nopf' not in X) else []

    def load_q(first):
        if first:
            E.I('s_lshl_b32', s(sTmp + 1), s(sP), 7)
        else:
            E.I('s_sub_u32', s(sTmp + 1), 15, s(sP))
            E.I('s_lshl_b32', s(sTmp + 1), s(sTmp + 1), 7)
        E.I('s_lshl_b32', s(sTmp), s(sQg), 5)
        E.I('s_add_u32', s(sTmp), s(sTmp), s(sTmp + 1))
        E.I('s_lshl_b32', s(sTmp), s(sTmp), 8)
        E.I('v_lshlrev_b32', v(vQa), 4, v(vLane))
        E.I('s_lshl_b32', s(sTmp + 1), s(sHead), 19)
        E.I('s_add_u32', s(sTmp), s(sTmp), s(sTmp + 1))
        E.I('v_add_u32', v(vQa), s(sTmp), v(vQa))
        for t in range(8):
            E.I('buffer_load_dwordx4', v(vQ + 4 * t, 4), v(vQa), s(sQ, 4), s(s4k) if t >= 4 else 0,
                mods=f'offen offset:{1024 * (t & 3)}')

    def mix(fl, d, start, step):
        for n, g in enumerate(d):
            fl.insert(min(len(fl), start + step * n), g)
        return fl

    def body(par, d, masked):
        fl = mix(soft_b(par) + soft_a(par ^ 1, masked), d, 4, 7 if not masked else 10)
        if not masked:
            fl = mix(fl, pf_items(), 10, 30)
        run_items(qk_items(par ^ 1, par ^ 1) + pv_items(par, par), fl, 6)
        stamp()
        stamp()

    def sync(novm=False):
        E.wait(vm=None if novm else 0, lgkm=0)
        E.barrier()

    load_q(True)
    prefetch_setup()
    E.I('s_mov_b32', s(sBlk), 0)
    E.I('s_mov_b32', s(sPar), 0)
    Lfin = name + '_fin'
    E.I('s_cmp_ge_u32', s(sW), 4)
    E.branch('s_cbranch_scc1', f'{name}_blk1p')
    for grp in range(2):
        G['grp'] = grp
        if grp == 1:
            E.raw(f'{name}_blk1p:')
            if 'aprio' in X:
                E.I('s_setprio', 1)
        Lblk = f'{name}_blk{grp}'
        E.label(Lblk)
        E.I('s_sub_u32', s(sTmp), 15, s(sP))
        E.I('s_cmp_eq_u32', s(sBlk), 0)
        E.I('s_cselect_b32', s(sCnt), s(sP), s(sTmp))
        E.I('s_lshl_b32', s(sQ0), s(sCnt), 7)
        for r in range(64):
            E.I('v_mov_b32', v(vO + r), 0)
        for r in range(16):
            E.I('v_mov_b32', v(vNM + r), 0)
        E.I('v_mov_b32', v(vM), 0)
        E.I('v_mov_b32', v(vThr), '0xff800000')
        E.I('v_mov_b32', v(vFloor), '0xff800000')
        E.I('v_mov_b32', v(vL), 0)
        E.I('v_mov_b32', v(vL2), 0)
        E.I('s_lshl_b32', s(sTmp), s(sQg), 5)
        E.I('s_lshl_b32', s(sTmp + 1), s(sKh), 6)
        E.I('s_sub_u32', s(sTmp), s(sTmp), s(sTmp + 1))
        E.I('v_add_u32', v(vKey), s(sTmp), v(vL31))
        E.I('v_lshlrev_b32', v(t0), 2, v(vHH))
        E.I('v_sub_u32', v(vKey), v(vKey), v(t0))

        L = lambda tag, par: f'{name}_{tag}{par}_{grp}'
        E.I('s_cmp_eq_u32', s(sPar), 1)
        E.branch('s_cbranch_scc1', L('pro', 1))
        for par in range(2):
            E.label(L('pro', par))
            sync()
            E.I('s_cmp_eq_u32', s(sCnt), 0)
            E.branch('s_cbranch_scc1', L('pro1', par))
            E.I('s_add_u32', s(sKoff), s(sKoff), 128 * 256)
            qk_phase(par, par, dma_k(par ^ 1) + dma_v(par), 1)
            for f in soft_a(par, False):
                f()
            check(par)
            E.branch('s_branch', L('loop', par))
            E.label(L('pro1', par))
            E.I('s_mov_b32', s(sKoff), 0)
            qk_phase(par, par, dma_v(par) + dma_k(par ^ 1), 1)
            for f in soft_a(par, True):
                f()
            check(par)
            E.branch('s_branch', L('epi', par))
        for par in range(2):
            E.label(L('loop', par))
            E.I('s_sub_u32', s(sCnt), s(sCnt), 1)
            stamp()
            sync(novm=(grp == 1))
            stamp()
            E.I('s_cmp_eq_u32', s(sCnt), 0)
            E.branch('s_cbranch_scc1', L('last', par))
            E.I('s_add_u32', s(sKoff), s(sKoff), 128 * 256)
            E.I('s_add_u32', s(sVoff), s(sVoff), 8192)
            body(par, dma_k(par) + dma_v(par ^ 1), False)
            check(par ^ 1)
            E.branch('s_branch', L('loop', par ^ 1))
            E.label(L('last', par))
            E.I('s_mov_b32', s(sKoff), 0)
            E.I('s_add_u32', s(sVoff), s(sVoff), 8192)
            body(par, dma_v(par ^ 1) + dma_k(par), True)
            check(par ^ 1)
            E.branch('s_branch', L('epi', par ^ 1))
        Lmerge = f'{name}_merge{grp}'
        for par in range(2):
            E.label(L('epi', par))
            E.wait(vm=(8 if grp == 0 else None), lgkm=0)
            E.barrier()
            load_q(False)
            pv_phase(par, par, soft_b(par), 22)
            E.I('s_mov_b32', s(sPar), par ^ 1)
            E.I('s_mov_b32', s(sNext), par * 32768)
            E.I('s_mov_b32', s(sVoff), 0)
            if par == 0:
                E.branch('s_branch', Lmerge)
        E.label(Lmerge)
        E.wait(lgkm=0)
        E.barrier()
        E.I('v_add_f32', v(vL), v(vL), v(vL2))
        E.I('v_mov_b32', v(t0), v(vL))
        E.I('v_permlane32_swap_b32', v(vL), v(t0))
        E.I('v_add_f32', v(vL), v(vL), v(t0))
        E.I('s_lshl_b32', s(sTmp), s(sQg), 13)
        E.I('s_add_u32', s(sTmp), s(sTmp), s(sNext))
        E.I('s_lshl_b32', s(sTmp + 1), s(sKh), 16)
        E.I('v_lshlrev_b32', v(t2), 4, v(vLane))
        E.I('v_add_u32', v(t2), s(sTmp), v(t2))
        E.I('v_add_u32', v(t1), s(sTmp + 1), v(t2))
        E.I('s_xor_b32', s(sTmp + 1), s(sTmp + 1), 65536)
        E.I('v_add_u32', v(t2), s(sTmp + 1), v(t2))
        Lk1, Lj = E.newlabel(f'{name}_mk1'), E.newlabel(f'{name}_mj')
        E.I('s_cmp_eq_u32', s(sKh), 1)
        E.branch('s_cbranch_scc1', Lk1)
        for kh in range(2):
            give = vO + 32 * (1 - kh)
            if kh == 1:
                E.label(Lk1)
            for q in range(8):
                E.I('ds_write_b128', v(t1), v(give + 4 * q, 4), mods=f'offset:{1024 * q}')
            if kh == 0:
                E.branch('s_branch', Lj)
        E.label(Lj)
        S0 = vS[0]
        E.I('v_lshlrev_b32', v(t3), 3, v(vLane))
        E.I('s_lshl_b32', s(sTmp), s(sW), 9)
        E.I('s_add_u32', s(sTmp), s(sTmp), 131072)
        E.I('v_add_u32', v(t0), s(sTmp), v(t3))
        E.I('v_mov_b32', v(S0), v(vM))
        E.I('v_mov_b32', v(S0 + 1), v(vL))
        E.I('ds_write_b64', v(t0), v(S0, 2))
        E.I('s_xor_b32', s(sTmp), s(sTmp), 2048)
        E.I('v_add_u32', v(t0), s(sTmp), v(t3))
        E.wait(lgkm=0)
        E.barrier()
        E.I('ds_read_b64', v(S0 + 2, 2), v(t0))
        for q in range(8):
            E.I('ds_read_b128', v(vS[1] + 4 * q, 4), v(t2), mods=f'offset:{1024 * q}')
        E.wait(lgkm=0)
        mm, a1, a2 = S0 + 4, S0 + 5, S0 + 6
        E.I('v_max_f32', v(mm), v(vM), v(S0 + 2))
        E.I('v_sub_f32', v(a1), v(vM), v(mm))
        E.I('v_sub_f32', v(a2), v(S0 + 2), v(mm))
        E.I('v_exp_f32', v(a1), v(a1))
        E.I('v_exp_f32', v(a2), v(a2))
        E.I('v_mul_f32', v(mm), v(vL), v(a1))
        E.I('v_fma_f32', v(mm), v(S0 + 3), v(a2), v(mm))
        E.I('v_rcp_f32', v(mm), v(mm))
        E.I('v_mul_f32', v(a1), v(a1), v(mm))
        E.I('v_mul_f32', v(a2), v(a2), v(mm))
        E.I('s_lshl_b32', s(sTmp), s(sQg), 5)
        E.I('s_add_u32', s(sTmp), s(sTmp), s(sQ0))
        E.I('s_lshl_b32', s(sTmp), s(sTmp), 13)
        E.I('v_lshlrev_b32', v(t0), 4, v(vLane))
        E.I('s_lshl_b32', s(sTmp + 1), s(sHead), 13)
        E.I('s_add_u32', s(sTmp), s(sTmp), s(sTmp + 1))
        E.I('s_lshl_b32', s(sTmp + 1), s(sKh), 12)
        E.I('s_add_u32', s(sTmp), s(sTmp), s(sTmp + 1))
        E.I('v_add_u32', v(t0), s(sTmp), v(t0))
        vPk = vS[0] + 8
        Lk1, Lj = E.newlabel(f'{name}_sk1'), E.newlabel(f'{name}_sj')
        E.I('s_cmp_eq_u32', s(sKh), 1)
        E.branch('s_cbranch_scc1', Lk1)
        for kh in range(2):
            keep = vO + 32 * kh
            if kh == 1:
                E.label(Lk1)
            for r in range(32):
                E.I('v_mul_f32', v(keep + r), v(keep + r), v(a1))
                E.I('v_fma_f32', v(keep + r), v(vS[1] + r), v(a2), v(keep + r))
            for g in range(4):
                for d in range(4):
                    E.I('v_cvt_pk_bf16_f32', v(vPk + 4 * g + d), v(keep + 8 * g + 2 * d), v(keep + 8 * g + 2 * d + 1))
                E.I('buffer_store_dwordx4', v(vPk + 4 * g, 4), v(t0), s(sO, 4), 0, mods=f'offen offset:{1024 * g} {STF}')
            if kh == 0:
                E.branch('s_branch', Lj)
        E.label(Lj)
        E.I('s_add_u32', s(sBlk), s(sBlk), 1)
        E.I('s_cmp_lt_u32', s(sBlk), 2)
        E.branch('s_cbranch_scc1', Lblk)
        if grp == 0:
            E.branch('s_branch', Lfin)
    E.label(Lfin)
    if 'stamp' in X:
        E.I('s_memrealtime', 's[90:91]')
        E.I('s_memtime', 's[88:89]')
        E.wait(lgkm=0)
        E.I('v_writelane_b32', v(vStamp), 's94', 60)
        E.I('v_writelane_b32', v(vStamp), 's90', 61)
        E.I('s_sub_u32', 's90', 's90', 's94')
        E.I('s_sub_u32', 's88', 's88', 's92')
        E.I('v_writelane_b32', v(vStamp), 's90', 62)
        E.I('v_writelane_b32', v(vStamp), 's88', 63)
        E.I('s_load_dwordx2', 's[96:97]', 's[0:1]', ARG['ws'])
        E.wait(lgkm=0)
        E.I('s_add_u32', 's96', 's96', (128 + int(name[1])) << 20)
        E.I('s_addc_u32', 's97', 's97', 0)
        E.I('s_and_b32', 's97', 's97', '0xffff')
        E.I('s_mov_b32', 's98', 1 << 20)
        E.I('s_mov_b32', 's99', '0x00020000')
        E.I('v_lshlrev_b32', v(t0), 2, 'v0')
        E.I('s_lshl_b32', s(sTmp), 's2', 11)
        E.I('v_add_u32', v(t0), s(sTmp), v(t0))
        E.I('buffer_store_dword', v(vStamp), v(t0), 's[96:99]', 0, mods='offen')
    E.label(Lend)
    E.I('s_endpgm')
    kernel_footer(E, name, V.n)
    return 139264 + 1024
```

```python
from emit import Emitter, v, s, a
import os
X = set(os.environ.get('X', '').split(','))
STF = os.environ.get('STF', '')

WS_Q = 0
WS_K = 16 << 20
WS_V = 32 << 20
WS_CTX = 48 << 20
WS_H = 64 << 20
WS_HH = 66 << 20
WS_ST = 76 << 20
WS_BYTES = 268435456

ARG = dict(x=0, ckv=8, wq=16, wuk=24, wuv=32, wo=40, bx=48, wg=56, wu=64, wd=72, out=80, dbg=88, ws=96)


class VAlloc:
    def __init__(self, start=1):
        self.n = start

    def get(self, cnt=1, align=1):
        self.n = (self.n + align - 1) // align * align
        r = self.n
        self.n += cnt
        return r


def kernel_header(E, name):
    E.raw('.text')
    E.raw(f'.globl {name}')
    E.raw('.p2align 8')
    E.raw(f'.type {name},@function')
    E.raw(f'{name}:')


def kernel_footer(E, name, nvgpr, nsgpr=102):
    nv = (nvgpr + 3) // 4 * 4
    E.raw('.section .rodata,"a"')
    E.raw('.p2align 6')
    E.raw(f'.amdhsa_kernel {name}')
    E.raw(f'  .amdhsa_next_free_vgpr {nv}')
    E.raw(f'  .amdhsa_next_free_sgpr {nsgpr}')
    E.raw(f'  .amdhsa_accum_offset {nv}')
    E.raw('  .amdhsa_group_segment_fixed_size 0')
    E.raw('  .amdhsa_kernarg_size 104')
    E.raw('  .amdhsa_user_sgpr_count 2')
    E.raw('  .amdhsa_user_sgpr_kernarg_segment_ptr 1')
    E.raw('  .amdhsa_system_sgpr_workgroup_id_x 1')
    E.raw('.end_amdhsa_kernel')


class SRDs:
    def __init__(self, E, sbase):
        self.E = E
        self.next = sbase
        self.req = []

    def want(self, arg, off, nbytes):
        r = self.next
        self.next += 4
        self.req.append((r, arg, off, nbytes))
        return r

    def build(self):
        E = self.E
        for r, arg, off, nbytes in self.req:
            E.I('s_load_dwordx2', s(r, 2), 's[0:1]', ARG[arg])
        E.wait(lgkm=0)
        for r, arg, off, nbytes in self.req:
            if off:
                E.I('s_add_u32', s(r), s(r), off)
                E.I('s_addc_u32', s(r + 1), s(r + 1), 0)
            E.I('s_and_b32', s(r + 1), s(r + 1), '0xffff')
            E.I('s_mov_b32', s(r + 2), nbytes)
            E.I('s_mov_b32', s(r + 3), '0x00020000')


def swz_a(RB):
    return (1, 7) if RB == 128 else (0, 15)


def gen_gemm(E, name, cfg):
    BM, BN, BK = cfg['BM'], cfg['BN'], cfg['BK']
    WM, WN, WK = cfg['WM'], cfg['WN'], cfg['WK']
    NST = cfg['NST']
    NW = WM * WN * WK
    jobs = cfg['jobs']
    regions = cfg['regions']
    assert sum(regions) == BN
    TM, TN = BM // WM // 32, BN // WN // 32
    assert (TM == 2 and TN == 2) or cfg.get('red')
    STEPS = BK // 16 // WK
    RBA = BK * 2
    A_BYTES = BM * RBA
    reg_off = []
    o = A_BYTES
    for rw in regions:
        reg_off.append(o)
        o += BK * rw * 2
    STAGE_BYTES = o
    SCR = NST * STAGE_BYTES
    lds_total = SCR + NW * 512
    if cfg.get('red'):
        lds_total = SCR + NW * 2048 + NW * 256
    cfg['lds'] = lds_total
    assert lds_total <= 163840

    kernel_header(E, name)
    V = VAlloc(1)
    sW, sT, sM0, sN0, sWG = 3, 4, 5, 6, 7
    sTmp = 8
    srd = SRDs(E, 12)
    for j in jobs:
        j['sA'] = srd.want(*j['A'])
        j['sW'] = [srd.want(*w) for w in j['W']]
        j['sO'] = srd.want(*j['O'])
        if 'R' in j:
            j['sR'] = srd.want(*j['R'])
        if 'ST' in j:
            j['sST'] = srd.want(*j['ST'])
    assert srd.next <= 100

    E.I('s_cmp_ge_u32', 's2', cfg['nwg'])
    Lend = f'{name}_end'
    E.branch('s_cbranch_scc1', Lend)
    cfg['tilemap'](E, sM0, sN0, sTmp)
    srd.build()

    vLane = V.get()
    vL31 = V.get()
    vHH = V.get()
    vT0, vT1, vT2, vT3 = V.get(), V.get(), V.get(), V.get()
    E.I('v_and_b32', v(vLane), 63, 'v0')
    E.I('v_lshrrev_b32', v(vT0), 6, 'v0')
    E.I('v_readfirstlane_b32', s(sW), v(vT0))
    E.I('v_and_b32', v(vL31), 31, 'v0')
    E.I('v_bfe_u32', v(vHH), 'v0', 5, 1)
    sWm, sWn, sWk = 96, 97, 98
    E.I('s_and_b32', s(sWn), s(sW), WN - 1)
    E.I('s_lshr_b32', s(sTmp), s(sW), {1: 0, 2: 1, 4: 2}[WN])
    E.I('s_and_b32', s(sWm), s(sTmp), WM - 1)
    E.I('s_lshr_b32', s(sWk), s(sTmp), {1: 0, 2: 1, 4: 2, 8: 3}[WM])
    E.I('s_lshl_b32', s(sWG), s(sW), 10)

    RA = 1024 // RBA
    CPR_A = RBA // 16
    NA = BM // RA // NW
    assert NA * RA * NW == BM
    lda_set = sorted(set(j['lda'] for j in jobs))
    vAoff = {}
    sh, mk = swz_a(RBA)
    for lda in lda_set:
        r = V.get()
        vAoff[lda] = r
        E.I('v_lshrrev_b32', v(vT0), CPR_A.bit_length() - 1, v(vLane))
        E.I('s_mul_i32', s(sTmp), s(sW), RA)
        E.I('v_add_u32', v(vT0), s(sTmp), v(vT0))
        E.I('v_lshrrev_b32', v(vT1), sh, v(vT0))
        E.I('v_and_b32', v(vT1), mk, v(vT1))
        E.I('v_and_b32', v(vT2), CPR_A - 1, v(vLane))
        E.I('v_xor_b32', v(vT1), v(vT1), v(vT2))
        if lda < 0:
            assert BK * 64 == NW * 1024
            E.I('v_lshlrev_b32', v(vT2), 4, v(vLane))
            E.I('s_lshr_b32', s(sTmp), s(sM0), 5)
            E.I('s_mul_i32', s(sTmp), s(sTmp), -lda)
            E.I('s_add_u32', s(sTmp), s(sTmp), s(sWG))
            E.I('v_add_u32', v(r), s(sTmp), v(vT2))
            continue
        E.I('v_lshlrev_b32', v(vT1), 4, v(vT1))
        E.I('v_add_u32', v(vT0), s(sM0), v(vT0))
        E.I('s_mov_b32', s(sTmp), lda)
        E.I('v_mul_lo_u32', v(vT0), v(vT0), s(sTmp))
        E.I('v_add_u32', v(r), v(vT0), v(vT1))
    vWoff = {}
    NWD = []
    for ri, rw in enumerate(regions):
        RBW = rw * 2
        RW_ = 1024 // RBW
        CPR_W = RBW // 16
        n = BK // RW_ // NW
        assert n * RW_ * NW == BK
        NWD.append(n)
        for ldw in sorted(set(j['ldw'] for j in jobs)):
            r = V.get()
            vWoff[(ri, ldw)] = r
            E.I('v_lshrrev_b32', v(vT0), CPR_W.bit_length() - 1, v(vLane))
            if RBW == 256:
                E.I('v_and_b32', v(vT1), 3, v(vT0))
            else:
                E.I('v_bfe_u32', v(vT1), v(vT0), 1, 1)
            E.I('v_lshlrev_b32', v(vT1), 2, v(vT1))
            E.I('v_and_b32', v(vT2), CPR_W - 1, v(vLane))
            E.I('v_xor_b32', v(vT1), v(vT1), v(vT2))
            E.I('v_lshlrev_b32', v(vT1), 4, v(vT1))
            E.I('s_mul_i32', s(sTmp), s(sW), RW_)
            E.I('v_add_u32', v(vT0), s(sTmp), v(vT0))
            E.I('s_mov_b32', s(sTmp), ldw)
            E.I('v_mul_lo_u32', v(vT0), v(vT0), s(sTmp))
            E.I('v_add_u32', v(vT0), v(vT0), v(vT1))
            E.I('s_lshl_b32', s(sTmp), s(sN0), 1)
            E.I('v_add_u32', v(r), s(sTmp), v(vT0))
            if 'linw' in X:
                E.I('v_lshlrev_b32', v(r), 4, v(vLane))
                E.I('s_mul_i32', s(sTmp), s(sN0), jobs[0]['K'] * 2)
                E.I('s_add_u32', s(sTmp), s(sTmp), s(sWG))
                E.I('v_add_u32', v(r), s(sTmp), v(r))

    PERMW = any(j.get('ln') for j in jobs)
    vXa = [[V.get() for _ in range(TM)] for _ in range(STEPS)]
    E.I('s_lshl_b32', s(sTmp), s(sWm), 6)
    E.I('v_add_u32', v(vT0), s(sTmp), v(vL31))
    E.I('v_lshrrev_b32', v(vT1), sh, v(vT0))
    E.I('v_and_b32', v(vT1), mk, v(vT1))
    E.I('v_mul_u32_u24', v(vT0), RBA, v(vT0))
    LINA = lda_set[0] < 0
    for ks in range(STEPS):
        if LINA:
            assert not PERMW
            E.I('s_mul_i32', s(sTmp), s(sWk), STEPS * 1024)
            E.I('s_mul_i32', s(sTmp + 1), s(sWm), TM * BK * 64)
            E.I('s_add_u32', s(sTmp), s(sTmp), s(sTmp + 1))
            E.I('v_lshlrev_b32', v(vT3), 4, v(vLane))
            for sl in range(TM):
                E.I('s_add_u32', s(sTmp + 1), s(sTmp), ks * 1024 + sl * BK * 64)
                E.I('v_add_u32', v(vXa[ks][sl]), s(sTmp + 1), v(vT3))
            continue
        if PERMW:
            E.I('s_xor_b32', s(sTmp + 1), s(sWm), ks)
        else:
            E.I('s_mov_b32', s(sTmp + 1), ks)
        E.I('s_mul_i32', s(sTmp), s(sWk), STEPS)
        E.I('s_add_u32', s(sTmp), s(sTmp), s(sTmp + 1))
        E.I('s_lshl_b32', s(sTmp), s(sTmp), 1)
        E.I('v_add_u32', v(vT3), s(sTmp), v(vHH))
        E.I('v_xor_b32', v(vT3), v(vT3), v(vT1))
        E.I('v_lshl_add_u32', v(vT3), v(vT3), 4, v(vT0))
        for sl in range(TM):
            if PERMW:
                E.I('s_xor_b32', s(sTmp), s(sWn), sl)
            else:
                E.I('s_mov_b32', s(sTmp), sl)
            E.I('s_mul_i32', s(sTmp), s(sTmp), 32 * RBA)
            E.I('v_add_u32', v(vXa[ks][sl]), s(sTmp), v(vT3))
    perms = sorted(set(bool(j.get('perm')) for j in jobs))
    vWa = {}
    fr = cfg['frag']
    for pm in perms:
        for jn in range(TN):
            ri, cm, cc = fr(jn)
            RBW = regions[ri] * 2
            E.I('v_bfe_u32', v(vT0), v(vLane), 2, 2)
            E.I('v_lshrrev_b32', v(vT1), 5, v(vLane))
            E.I('v_lshlrev_b32', v(vT1), 2 if pm else 3, v(vT1))
            E.I('v_add_u32', v(vT1), v(vT1), v(vT0))
            E.I('s_mul_i32', s(sTmp), s(sWk), 16 * STEPS)
            E.I('v_add_u32', v(vT1), s(sTmp), v(vT1))
            E.I('v_mul_u32_u24', v(vT1), RBW, v(vT1))
            E.I('v_bfe_u32', v(vT2), v(vLane), 4, 1)
            E.I('v_lshlrev_b32', v(vT2), 4, v(vT2))
            E.I('v_and_b32', v(vT3), 3, v(vLane))
            E.I('v_lshl_add_u32', v(vT2), v(vT3), 2, v(vT2))
            E.I('s_mul_i32', s(sTmp), s(sWn), cm)
            E.I('s_add_u32', s(sTmp), s(sTmp), cc)
            E.I('v_add_u32', v(vT2), s(sTmp), v(vT2))
            E.I('v_lshlrev_b32', v(vT2), 1, v(vT2))
            if RBW == 256:
                E.I('v_lshlrev_b32', v(vT3), 6, v(vT0))
            else:
                E.I('v_bfe_u32', v(vT3), v(vT0), 1, 1)
                E.I('v_lshlrev_b32', v(vT3), 6, v(vT3))
            E.I('v_xor_b32', v(vT2), v(vT2), v(vT3))
            E.I('v_add_u32', v(vT1), v(vT1), v(vT2))
            for ks in range(STEPS):
                r = V.get()
                vWa[(pm, jn, ks)] = r
                if PERMW:
                    E.I('s_xor_b32', s(sTmp), s(sWm), ks)
                else:
                    E.I('s_mov_b32', s(sTmp), ks)
                E.I('s_mul_i32', s(sTmp), s(sTmp), 16 * RBW)
                E.I('s_add_u32', s(sTmp), s(sTmp), reg_off[ri])
                E.I('v_add_u32', v(r), s(sTmp), v(vT1))

    vStamp = V.get()
    nst = [0]

    def stamp():
        if 'stamp' not in X:
            return
        E.I('s_memtime', 's[100:101]')
        E.wait(lgkm=0)
        E.I('v_writelane_b32', v(vStamp), 's100', nst[0])
        nst[0] += 1
    stamp()
    acc = V.get(64, 4)
    fX = [[V.get(4, 4) for _ in range(TM)] for _ in range(2)]
    fW = [[V.get(4, 4) for _ in range(TN)] for _ in range(2)]
    fS = V.get(8, 4)
    anyln = any(j.get('ln') for j in jobs)
    if anyln:
        vS1 = [V.get() for _ in range(TM)]
        vS2 = [V.get() for _ in range(TM)]
        vCS = [V.get() for _ in range(TN)]
        vOnes = V.get()
        vX1 = [V.get() for _ in range(4)]
        vX2 = [V.get() for _ in range(4)]
        vXC = [[V.get() for _ in range(4)] for _ in range(TN)]
        E.I('v_mov_b32', v(vOnes), '0x3f803f80')
    cfg['V'] = V

    def A(i, jn):
        return acc + (i * TN + jn) * 16

    stages = []
    for ji, j in enumerate(jobs):
        for k0 in range(0, j['K'], BK):
            stages.append((ji, k0))
    vm = dict(n=0)
    last_dma = {}

    dmaq = []

    def issue_dma(st, now=False):
        if 'nodma' in X:
            last_dma[st] = vm['n']
            return
        ji, k0 = stages[st]
        j = jobs[ji]
        base = (st % NST) * STAGE_BYTES
        groups = []
        for t in range(NA):
            if j['lda'] < 0:
                go_ = k0 * 64 + t * (-j['lda'])
            else:
                go_ = k0 * 2 + t * NW * RA * j['lda']
            groups.append((base + t * NW * 1024, go_, vAoff[j['lda']], j['sA']))
        for ri, rw in enumerate(regions):
            RW_ = 1024 // (rw * 2)
            for t in range(NWD[ri]):
                groups.append((base + reg_off[ri] + t * NW * 1024, (k0 + t * NW * RW_) * ((rw * 2) if 'linw' in X else j['ldw']),
                               vWoff[(ri, j['ldw'])], j['sW'][ri]))
        for n, g in enumerate(groups):
            def go(g=g, lastone=(n == len(groups) - 1)):
                E.I('s_add_u32', 'm0', s(sWG), g[0])
                E.I('s_mov_b32', s(sT), g[1])
                E.I('buffer_load_dwordx4', v(g[2]), s(g[3], 4), s(sT), mods='offen lds')
                vm['n'] += 1
                if lastone:
                    last_dma[st] = vm['n']
            if now:
                go()
            else:
                dmaq.append(go)

    addr_regs = [r for x in vXa for r in x] + list(vWa.values())
    cur_slot = [0]

    def set_slot(slot):
        d = (slot - cur_slot[0]) * STAGE_BYTES
        if d:
            for r in addr_regs:
                if d > 0:
                    E.I('v_add_u32', v(r), d, v(r))
                else:
                    E.I('v_subrev_u32', v(r), -d, v(r))
        cur_slot[0] = slot

    def read_frags(j, ks, setid):
        if 'noread' in X:
            return
        pm = bool(j.get('perm'))
        for i in range(TM):
            E.I('ds_read_b128', v(fX[setid][i], 4), v(vXa[ks][i]))
        for jn in range(TN):
            RBW = regions[fr(jn)[0]] * 2
            for hf in range(2):
                koff = 8 * hf if pm else 4 * hf
                E.I('ds_read_b64_tr_b16', v(fW[setid][jn] + 2 * hf, 2), v(vWa[(pm, jn, ks)]), mods=f'offset:{koff * RBW}')

    if jobs[0].get('extstats'):
        vXS = V.get(16, 4)
        jobs[0]['vXS'] = vXS
        E.I('s_lshl_b32', s(sTmp), s(sWm), 6)
        E.I('s_add_u32', s(sTmp), s(sTmp), s(sM0))
        E.I('v_add_u32', v(vT0), s(sTmp), v(vL31))
        E.I('v_lshlrev_b32', v(vT0), 6, v(vT0))
        E.I('v_lshl_add_u32', v(vT0), v(vHH), 5, v(vT0))
        slot_addr(dict(E=E, sTmp=sTmp, PERMW=PERMW, sWn=sWn), vT0, vT1, 2048)
        for i in range(2):
            for q in range(2):
                E.I('buffer_load_dwordx4', v(vXS + 8 * i + 4 * q, 4), v((vT0, vT1)[i]), s(jobs[0]['sST'], 4), 0,
                    mods=f'offen offset:{16 * q}')
                vm['n'] += 1
    for st in range(min(NST, len(stages))):
        issue_dma(st, now=True)
    def stage_sync(st):
        while dmaq:
            dmaq.pop(0)()
        if 'nowait' in X:
            E.wait(vm=int(os.environ.get('VMW', '24')))
        else:
            E.wait(vm=min(63, vm['n'] - last_dma[st]), lgkm=0)
            E.barrier()
        if st >= 1 and st + NST - 1 < len(stages):
            issue_dma(st + NST - 1)
        set_slot(st % NST)

    pending = []
    if cfg.get('prefetch') and 'nopf' not in X:
        vPf = V.get()
        sPfW = 95
        E.I('v_lshlrev_b32', v(vPf), 4, v(vLane))
        E.I('s_lshl_b32', s(sPfW), 's2', 3)
        E.I('s_add_u32', s(sPfW), s(sPfW), s(sW))
        for _ in range(12):
            pending.append(lambda: None)
        for sr, per in cfg['prefetch'](jobs):
            for i in range(per):
                def go(sr=sr, per=per, i=i):
                    E.I('s_mov_b32', 'm0', SCR)
                    E.I('s_mul_i32', s(sT), s(sPfW), per * 1024)
                    E.I('s_add_u32', s(sT), s(sT), i * 1024)
                    E.I('buffer_load_dwordx4', v(vPf), s(sr, 4), s(sT), mods='offen lds')
                    vm['n'] += 1
                pending.append(go)
                for _ in range(5):
                    pending.append(lambda: None)
    stage_sync(0)
    setid = 0
    read_frags(jobs[stages[0][0]], 0, setid)
    for st, (ji, k0) in enumerate(stages):
        j = jobs[ji]
        first = (k0 == 0)
        lastk = (k0 + BK >= j['K'])
        stamp()
        if first and j.get('ln'):
            for r in vX1 + vX2 + vXC[0] + vXC[1]:
                E.I('v_mov_b32', v(r), 0)
        for ks in range(STEPS):
            cur = setid
            setid ^= 1
            if ks + 1 < STEPS:
                read_frags(j, ks + 1, setid)
                E.wait(lgkm=TM + 2 * TN)
            elif st + 1 < len(stages):
                stage_sync(st + 1)
                read_frags(jobs[stages[st + 1][0]], 0, setid)
            else:
                E.wait(lgkm=0)
            lnq = []
            if j.get('ln') and 'noln' not in X:
                for q in range(0 if j.get('extstats') else 4):
                    x = fX[cur][0] + q
                    lnq.append(('v_lshlrev_b32', v(vT0), 16, v(x)))
                    lnq.append(('v_and_b32', v(vT1), '0xffff0000', v(x)))
                    lnq.append(('v_add_f32', v(vX1[q & 1]), v(vX1[q & 1]), v(vT0)))
                    lnq.append(('v_add_f32', v(vX1[2 + (q & 1)]), v(vX1[2 + (q & 1)]), v(vT1)))
                    lnq.append(('v_fma_f32', v(vX2[q & 1]), v(vT0), v(vT0), v(vX2[q & 1])))
                    lnq.append(('v_fma_f32', v(vX2[2 + (q & 1)]), v(vT1), v(vT1), v(vX2[2 + (q & 1)])))
                if ks == 0:
                    for q in range(4):
                        for jj in range(TN):
                            x = fW[cur][jj] + q
                            lnq.append(('v_lshlrev_b32', v(vT2), 16, v(x)))
                            lnq.append(('v_and_b32', v(vT3), '0xffff0000', v(x)))
                            lnq.append(('v_add_f32', v(vXC[jj][q & 1]), v(vXC[jj][q & 1]), v(vT2)))
                            lnq.append(('v_add_f32', v(vXC[jj][2 + (q & 1)]), v(vXC[jj][2 + (q & 1)]), v(vT3)))
            per = (len(lnq) + 3) // 4
            for i in range(TM):
                for jn in range(TN):
                    c = 0 if (first and ks == 0) else v(A(i, jn), 16)
                    if 'nomfma' in X and not (first and ks == 0):
                        pass
                    elif j.get('swap', True):
                        E.I('v_mfma_f32_32x32x16_bf16', v(A(i, jn), 16), v(fW[cur][jn], 4), v(fX[cur][i], 4), c)
                    else:
                        E.I('v_mfma_f32_32x32x16_bf16', v(A(i, jn), 16), v(fX[cur][i], 4), v(fW[cur][jn], 4), c)
                    for _ in range(2 if TM * TN * STEPS <= 4 else 1):
                        if dmaq:
                            dmaq.pop(0)()
                        elif pending:
                            pending.pop(0)()
                    for _ in range(per):
                        if lnq:
                            E.I(*lnq.pop(0))
        if lastk:
            env = dict(E=E, V=V, j=j, A=A, vL31=vL31, vHH=vHH, vLane=vLane, sWm=sWm, sWn=sWn, sWk=sWk, sW=sW,
                       sM0=sM0, sN0=sN0, sTmp=sTmp, sT=sT, vT=[vT0, vT1, vT2, vT3], fS=fS, vm=vm,
                       SCR=SCR, NW=NW, TM=TM, TN=TN, PERMW=PERMW, pending=pending, defer=(st + 1 < len(stages) and 'nodefer' not in X))
            if j.get('ln'):
                env.update(vS1=vS1, vS2=vS2, vCS=vCS)
                for dst, src in ((vS1[0], vX1), (vS2[0], vX2), (vCS[0], vXC[0]), (vCS[1], vXC[1])):
                    E.I('v_add_f32', v(src[0]), v(src[0]), v(src[1]))
                    E.I('v_add_f32', v(src[2]), v(src[2]), v(src[3]))
                    E.I('v_add_f32', v(dst), v(src[0]), v(src[2]))
            stamp()
            j['epi'](env)
            stamp()
    if 'stamp' in X:
        E.wait(vm=0)
        stamp()
        E.I('s_load_dwordx2', 's[96:97]', 's[0:1]', ARG['ws'])
        E.wait(lgkm=0)
        E.I('s_add_u32', 's96', 's96', (128 + int(name[1])) << 20)
        E.I('s_addc_u32', 's97', 's97', 0)
        E.I('s_and_b32', 's97', 's97', '0xffff')
        E.I('s_mov_b32', 's98', 1 << 20)
        E.I('s_mov_b32', 's99', '0x00020000')
        E.I('v_lshlrev_b32', v(vT0), 2, 'v0')
        E.I('s_lshl_b32', s(sTmp), 's2', 11)
        E.I('v_add_u32', v(vT0), s(sTmp), v(vT0))
        E.I('buffer_store_dword', v(vStamp), v(vT0), 's[96:99]', 0, mods='offen')

    E.label(Lend)
    E.I('s_endpgm')
    kernel_footer(E, name, V.n)
    return lds_total


def half_sum(E, r, tmp):
    E.I('v_mov_b32', v(tmp), v(r))
    E.I('v_permlane32_swap_b32', v(r), v(tmp))
    E.I('v_add_f32', v(r), v(r), v(tmp))


def ln_prepare(env):
    E, V = env['E'], env['V']
    vS1, vS2, vCS = env['vS1'], env['vS2'], env['vCS']
    t0, t1, t2 = env['vT'][0], env['vT'][1], env['vT'][2]
    sT = env['sTmp']
    SCR = env['SCR']
    half_sum(E, vS1[0], t0)
    half_sum(E, vS2[0], t0)
    for jn in range(env['TN']):
        half_sum(E, vCS[jn], t0)
    E.I('s_lshl_b32', s(sT), s(env['sW']), 9)
    E.I('s_add_u32', s(sT), s(sT), SCR)
    E.I('v_lshlrev_b32', v(t1), 2, v(env['vL31']))
    E.I('v_add_u32', v(t2), s(sT), v(t1))
    E.I('ds_write_b32', v(t2), v(vS1[0]))
    E.I('ds_write_b32', v(t2), v(vS2[0]), mods='offset:128')
    for jn in range(env['TN']):
        E.I('ds_write_b32', v(t2), v(vCS[jn]), mods=f'offset:{256 + 128 * jn}')
    E.wait(lgkm=0)
    E.barrier()
    E.I('s_lshl_b32', s(sT), s(env['sWm']), 10)
    E.I('s_add_u32', s(sT), s(sT), SCR)
    E.I('v_add_u32', v(t2), s(sT), v(t1))
    t3 = env['vT'][3]
    slot_addr(env, t2, t3, 512)
    for i in range(env['TM']):
        if env['j'].get('extstats'):
            xs = env['j']['vXS'] + 8 * i
            for c in range(2):
                dst = (vS1, vS2)[c][i]
                E.I('v_add_f32', v(xs + c), v(xs + c), v(xs + 2 + c))
                E.I('v_add_f32', v(xs + 4 + c), v(xs + 4 + c), v(xs + 6 + c))
                E.I('v_add_f32', v(dst), v(xs + c), v(xs + 4 + c))
                half_sum(E, dst, t0)
            continue
        E.I('ds_read_b32', v(vS1[i]), v((t2, t3)[i]))
        E.I('ds_read_b32', v(vS2[i]), v((t2, t3)[i]), mods='offset:128')
    if 'vCSx' not in env['j']:
        env['j']['vCSx'] = V.get(32, 4)
    if 'pk' not in env['vm']:
        env['vm']['pk'] = V.get(32, 4)
        env['vm']['pa'] = V.get(4)
    cs = env['j']['vCSx']
    cs2 = env['vm']['pk']
    E.I('s_lshl_b32', s(sT), s(env['sWn']), 9)
    E.I('s_add_u32', s(sT), s(sT), SCR + 256)
    E.I('v_lshlrev_b32', v(t1), 4, v(env['vHH']))
    E.I('v_add_u32', v(t1), s(sT), v(t1))
    for wm in range(4):
        dst = cs2 if wm else cs
        for jn in range(env['TN']):
            for q in range(4):
                E.I('ds_read_b128', v(dst + 16 * jn + 4 * q, 4), v(t1), mods=f'offset:{1024 * wm + 128 * jn + 32 * q}')
        if wm:
            E.wait(lgkm=0)
            for r in range(32):
                E.I('v_add_f32', v(cs + r), v(cs + r), v(cs2 + r))
    for i in range(env['TM']):
        E.I('v_mul_f32', v(vS1[i]), '0x3b000000', v(vS1[i]))
        E.I('v_mul_f32', v(vS2[i]), '0x3b000000', v(vS2[i]))
        E.I('v_fma_f32', v(vS2[i]), f'-{v(vS1[i])}', v(vS1[i]), v(vS2[i]))
        E.I('v_max_f32', v(vS2[i]), 0, v(vS2[i]))
        E.I('v_add_f32', v(vS2[i]), '0x3727c5ac', v(vS2[i]))
        E.I('v_rsq_f32', v(vS2[i]), v(vS2[i]))
        E.I('v_mul_f32', v(vS1[i]), v(vS1[i]), v(vS2[i]))
        E.I('v_sub_f32', v(vS1[i]), 0, v(vS1[i]))
    return vS2, vS1, cs


def ln_apply(env, vR, vMR, cs):
    E, A = env['E'], env['A']
    for i in range(env['TM']):
        for jn in range(env['TN']):
            for r in range(16):
                E.I('v_mul_f32', v(A(i, jn) + r), v(A(i, jn) + r), v(vR[i]))
                E.I('v_fma_f32', v(A(i, jn) + r), v(vMR[i]), v(cs + 16 * jn + r), v(A(i, jn) + r))


def pack_store(env, base_reg, vaddr, soff, off, srd, slot=None):
    E, V = env['E'], env['V']
    if env['defer']:
        if 'pk' not in env['vm']:
            env['vm']['pk'] = V.get(32, 4)
            env['vm']['pa'] = V.get(4)
        n = env.setdefault('npk', 0)
        f = env['vm']['pk'] + 8 * n
        env['npk'] = n + 1
        pa = env['vm']['pa'] + (slot if slot is not None else (0 if vaddr == env['vT'][0] else 1))
        E.I('v_mov_b32', v(pa), v(vaddr))
        vaddr = pa
    else:
        f = env['fS']
    for u in range(2):
        for d in range(4):
            E.I('v_cvt_pk_bf16_f32', v(f + 4 * u + d), v(base_reg + 8 * u + 2 * d), v(base_reg + 8 * u + 2 * d + 1))
    for u in range(2):
        if 'nostore' in X:
            continue

        def st(u=u, f=f, vaddr=vaddr):
            E.I('buffer_store_dwordx4', v(f + 4 * u, 4), v(vaddr), s(srd, 4), soff, mods=f'offen offset:{off + 1024 * u} {STF}')
            env['vm']['n'] += 1
        if env['defer']:
            env['pending'].append(st)
        else:
            st()


def lane_part(env, t0):
    E = env['E']
    E.I('v_lshlrev_b32', v(t0), 4, v(env['vLane']))


def slot_addr(env, t0, t1, delta):
    E = env['E']
    sT = env['sTmp']
    if env['PERMW']:
        E.I('s_mul_i32', s(sT), s(env['sWn']), delta)
        E.I('s_sub_u32', s(sT + 1), delta, s(sT))
        E.I('v_add_u32', v(t1), s(sT + 1), v(t0))
        E.I('v_add_u32', v(t0), s(sT), v(t0))
    else:
        E.I('v_add_u32', v(t1), delta, v(t0))


def epi_qk(env):
    E, j, A = env['E'], env['j'], env['A']
    if j.get('ln'):
        vR, vMR, cs = ln_prepare(env)
        for i in range(2):
            E.I('v_mul_f32', v(vR[i]), '0x3e0293ee', v(vR[i]))
            E.I('v_mul_f32', v(vMR[i]), '0x3e0293ee', v(vMR[i]))
        ln_apply(env, vR, vMR, cs)
    t0, t1 = env['vT'][0], env['vT'][1]
    sT = env['sTmp']
    lane_part(env, t0)
    E.I('s_lshl_b32', s(sT), s(env['sWm']), 6)
    E.I('s_add_u32', s(sT), s(sT), s(env['sM0']))
    E.I('s_lshl_b32', s(sT), s(sT), 8)
    E.I('s_lshl_b32', s(sT + 1), s(env['sN0']), 12)
    E.I('s_add_u32', s(sT), s(sT), s(sT + 1))
    E.I('s_lshl_b32', s(sT + 1), s(env['sWn']), 12)
    E.I('s_add_u32', s(sT), s(sT), s(sT + 1))
    E.I('v_add_u32', v(t0), s(sT), v(t0))
    slot_addr(env, t0, t1, 8192)
    for i in range(2):
        for jn in range(2):
            pack_store(env, A(i, jn), (t0, t1)[i], 0, 2048 * jn, j['sO'])


def epi_v(env):
    E, j, A = env['E'], env['j'], env['A']
    t0, t1 = env['vT'][0], env['vT'][1]
    sT = env['sTmp']
    lane_part(env, t0)
    E.I('s_lshl_b32', s(sT), s(env['sN0']), 12)
    E.I('s_lshl_b32', s(sT + 1), s(env['sWm']), 6)
    E.I('s_add_u32', s(sT + 1), s(sT + 1), s(env['sM0']))
    E.I('s_lshl_b32', s(sT + 1), s(sT + 1), 6)
    E.I('s_add_u32', s(sT), s(sT), s(sT + 1))
    E.I('s_lshl_b32', s(sT + 1), s(env['sWn']), 18)
    E.I('s_add_u32', s(sT), s(sT), s(sT + 1))
    E.I('v_add_u32', v(t0), s(sT), v(t0))
    t2 = env['vT'][2]
    slot_addr(env, t0, t2, 2048)
    for jn in range(2):
        if jn:
            E.I('v_add_u32', v(t0), 131072, v(t0))
            E.I('v_add_u32', v(t2), 131072, v(t2))
        for i in range(2):
            pack_store(env, A(i, jn), (t0, t2)[i], 0, 0, j['sO'], slot=2 * jn + i)


def epi_glu(env):
    E, j, A = env['E'], env['j'], env['A']
    vR, vMR, cs = ln_prepare(env)
    ln_apply(env, vR, vMR, cs)
    t0, t1 = env['vT'][0], env['vT'][1]
    sT = env['sTmp']
    for i in range(2):
        for r in range(16):
            g, u = A(i, 0) + r, A(i, 1) + r
            E.I('v_mul_f32', v(g), '0xbfb8aa3b', v(g))
            E.I('v_exp_f32', v(g), v(g))
            E.I('v_add_f32', v(g), 1.0, v(g))
            E.I('v_rcp_f32', v(g), v(g))
            E.I('v_mul_f32', v(g), v(g), v(u))
    lane_part(env, t0)
    E.I('s_lshl_b32', s(sT), s(env['sWm']), 6)
    E.I('s_add_u32', s(sT), s(sT), s(env['sM0']))
    E.I('s_mul_i32', s(sT), s(sT), 3584)
    E.I('s_lshl_b32', s(sT + 1), s(env['sWn']), 5)
    E.I('s_add_u32', s(sT + 1), s(sT + 1), s(env['sN0']))
    E.I('s_lshl_b32', s(sT + 1), s(sT + 1), 6)
    E.I('s_add_u32', s(sT), s(sT), s(sT + 1))
    E.I('v_add_u32', v(t0), s(sT), v(t0))
    slot_addr(env, t0, t1, 32 * 3584)
    for i in range(2):
        pack_store(env, A(i, 0), (t0, t1)[i], 0, 0, j['sO'])


def epi_red(env):
    E, j, A, V = env['E'], env['j'], env['A'], env['V']
    t0, t1, t2 = env['vT'][0], env['vT'][1], env['vT'][2]
    sT = env['sTmp']
    acc = A(0, 0)
    sWk, sWm, sWn = env['sWk'], env['sWm'], env['sWn']
    res = V.get(4, 2)
    rcv = V.get(8, 4)
    E.I('s_lshl_b32', s(sT), s(sWm), 5)
    E.I('s_add_u32', s(sT), s(sT), s(env['sM0']))
    E.I('v_add_u32', v(t2), s(sT), v(env['vL31']))
    E.I('v_lshlrev_b32', v(t2), 10, v(t2))
    E.I('v_lshl_add_u32', v(t2), v(env['vHH']), 3, v(t2))
    E.I('s_lshl_b32', s(sT), s(sWn), 5)
    E.I('s_add_u32', s(sT), s(sT), s(env['sN0']))
    E.I('s_lshl_b32', s(sT), s(sT), 1)
    E.I('s_lshl_b32', s(sT + 1), s(sWk), 5)
    E.I('s_add_u32', s(sT), s(sT), s(sT + 1))
    E.I('v_add_u32', v(t2), s(sT), v(t2))
    for q in range(2):
        E.I('buffer_load_dwordx2', v(res + 2 * q, 2), v(t2), s(j['sR'], 4), 0, mods=f'offen offset:{16 * q}')
    E.I('v_lshlrev_b32', v(t0), 4, v(env['vLane']))
    E.I('s_lshl_b32', s(sT), s(env['sW']), 11)
    E.I('s_add_u32', s(sT), s(sT), env['SCR'])
    E.I('v_add_u32', v(t1), s(sT), v(t0))
    E.I('s_xor_b32', s(sT + 1), s(env['sW']), 4)
    E.I('s_lshl_b32', s(sT + 1), s(sT + 1), 11)
    E.I('s_add_u32', s(sT + 1), s(sT + 1), env['SCR'])
    E.I('v_add_u32', v(t0), s(sT + 1), v(t0))
    L1, L2 = E.newlabel('red'), E.newlabel('red')
    E.I('s_cmp_eq_u32', s(sWk), 1)
    E.branch('s_cbranch_scc1', L1)
    for wk in range(2):
        if wk:
            E.label(L1)
        for q in range(2):
            E.I('ds_write_b128', v(t1), v(acc + 8 * (1 - wk) + 4 * q, 4), mods=f'offset:{1024 * q}')
        if wk:
            for r in range(8):
                E.I('v_mov_b32', v(acc + r), v(acc + 8 + r))
        else:
            E.branch('s_branch', L2)
    E.label(L2)
    E.wait(lgkm=0)
    E.barrier()
    for q in range(2):
        E.I('ds_read_b128', v(rcv + 4 * q, 4), v(t0), mods=f'offset:{1024 * q}')
    E.wait(vm=0, lgkm=0)
    for q in range(2):
        for d in range(2):
            x = res + 2 * q + d
            a0, a1 = acc + q * 4 + 2 * d, acc + q * 4 + 2 * d + 1
            E.I('v_lshlrev_b32', v(t0), 16, v(x))
            E.I('v_and_b32', v(x), '0xffff0000', v(x))
            E.I('v_add_f32', v(a0), v(a0), v(rcv + q * 4 + 2 * d))
            E.I('v_add_f32', v(a1), v(a1), v(rcv + q * 4 + 2 * d + 1))
            E.I('v_add_f32', v(a0), v(a0), v(t0))
            E.I('v_add_f32', v(a1), v(a1), v(x))
            E.I('v_cvt_pk_bf16_f32', v(x), v(a0), v(a1))
        E.I('buffer_store_dwordx2', v(res + 2 * q, 2), v(t2), s(j['sO'], 4), 0, mods=f'offen offset:{16 * q} {STF}')
    if 'sST' in j:
        s1, s2 = rcv, rcv + 1
        E.I('v_add_f32', v(s1), v(acc), v(acc + 1))
        E.I('v_mul_f32', v(s2), v(acc), v(acc))
        for r in range(1, 8):
            if r > 1:
                E.I('v_add_f32', v(s1), v(s1), v(acc + r))
            E.I('v_fma_f32', v(s2), v(acc + r), v(acc + r), v(s2))
        half_sum(E, s1, t0)
        half_sum(E, s2, t0)
        E.I('v_lshlrev_b32', v(t0), 3, v(env['vL31']))
        E.I('s_lshl_b32', s(sT), s(env['sW']), 8)
        E.I('s_add_u32', s(sT), s(sT), env['SCR'] + 16384)
        E.I('v_add_u32', v(t1), s(sT), v(t0))
        E.I('ds_write_b64', v(t1), v(s1, 2))
        E.wait(lgkm=0)
        E.barrier()
        L3 = E.newlabel('red')
        E.I('s_and_b32', s(sT + 1), s(env['sW']), 5)
        E.I('s_cmp_lg_u32', s(sT + 1), 0)
        E.branch('s_cbranch_scc1', L3)
        for n, off in enumerate((256, 1024, 1280)):
            E.I('ds_read_b64', v(rcv + 2 + 2 * n, 2), v(t1), mods=f'offset:{off}')
        E.wait(lgkm=0)
        for n in range(3):
            E.I('v_add_f32', v(s1), v(s1), v(rcv + 2 + 2 * n))
            E.I('v_add_f32', v(s2), v(s2), v(rcv + 3 + 2 * n))
        E.I('s_lshl_b32', s(sT), s(sWm), 5)
        E.I('s_add_u32', s(sT), s(sT), s(env['sM0']))
        E.I('v_add_u32', v(t0), s(sT), v(env['vL31']))
        E.I('v_lshlrev_b32', v(t0), 6, v(t0))
        E.I('s_lshr_b32', s(sT), s(env['sN0']), 3)
        E.I('v_add_u32', v(t0), s(sT), v(t0))
        E.I('buffer_store_dwordx2', v(s1, 2), v(t0), s(j['sST'], 4), 0, mods='offen')
        E.label(L3)


MB = 1 << 20


def cfg_k1():
    def tilemap(E, sM0, sN0, sT):
        E.I('s_and_b32', s(sN0), 's2', 31)
        E.I('s_lshl_b32', s(sN0), s(sN0), 7)
        E.I('s_lshr_b32', s(sM0), 's2', 5)
        E.I('s_lshl_b32', s(sM0), s(sM0), 8)
    jobs = [
        dict(A=('x', 0, 2 * MB), lda=1024, W=[('wq', 0, 4 * MB)], ldw=8192, K=512, O=('ws', WS_Q, 16 * MB),
             ln=True, swap=True, epi=epi_qk),
        dict(A=('ckv', 0, 2 * MB), lda=1024, W=[('wuk', 0, 4 * MB)], ldw=8192, K=512, O=('ws', WS_K, 16 * MB),
             swap=True, epi=epi_qk),
        dict(A=('ckv', 0, 2 * MB), lda=1024, W=[('wuv', 0, 4 * MB)], ldw=8192, K=512, O=('ws', WS_V, 16 * MB),
             swap=False, epi=epi_v),
    ]
    return dict(BM=256, BN=128, BK=64, WM=4, WN=2, WK=1, NST=3, regions=[128], jobs=jobs, nwg=256,
                prefetch=lambda J: [(J[1]['sA'], 1), (J[1]['sW'][0], 2), (J[2]['sW'][0], 2)],
                frag=lambda jn: (0, 64, 32 * jn), tilemap=tilemap, grid=256, block=512)


def cfg_k4():
    def tilemap(E, sM0, sN0, sT):
        E.I('s_mul_hi_u32', s(sM0), 's2', 153391690)
        E.I('s_mul_i32', s(sT), s(sM0), 28)
        E.I('s_sub_u32', s(sN0), 's2', s(sT))
        E.I('s_lshl_b32', s(sN0), s(sN0), 6)
        E.I('s_lshl_b32', s(sM0), s(sM0), 8)
    WB = 512 * 1792 * 2
    jobs = [dict(A=('ws', WS_H, 2 * MB), lda=1024, W=[('wg', 0, WB), ('wu', 0, WB)], ldw=3584, K=512,
                 O=('ws', WS_HH, 2048 * 3584), ST=('ws', WS_ST, 2048 * 64), extstats=True, ln=True, swap=True, epi=epi_glu)]
    return dict(BM=256, BN=128, BK=64, WM=4, WN=2, WK=1, NST=3, regions=[64, 64], jobs=jobs, nwg=224,
                frag=lambda jn: (jn, 32, 0), tilemap=tilemap, grid=224, block=512)


def cfg_red(which):
    def tilemap(E, sM0, sN0, sT):
        E.I('s_lshr_b32', s(sN0), 's2', 3)
        E.I('s_and_b32', s(sN0), s(sN0), 7)
        E.I('s_lshl_b32', s(sN0), s(sN0), 6)
        E.I('s_and_b32', s(sM0), 's2', 7)
        E.I('s_lshl_b32', s(sM0), s(sM0), 2)
        E.I('s_lshr_b32', s(sT), 's2', 6)
        E.I('s_add_u32', s(sM0), s(sM0), s(sT))
        E.I('s_lshl_b32', s(sM0), s(sM0), 6)
    if which == 3:
        jobs = [dict(A=('ws', WS_CTX, 16 * MB), lda=-262144, W=[('wo', 0, 4 * MB)], ldw=1024, K=4096, perm=True,
                     O=('ws', WS_H, 2 * MB), R=('x', 0, 2 * MB), ST=('ws', WS_ST, 2048 * 64), swap=True, epi=epi_red)]
    else:
        jobs = [dict(A=('ws', WS_HH, 2048 * 3584), lda=-114688, W=[('wd', 0, 1792 * 1024)], ldw=1024, K=1792, perm=True,
                     O=('out', 0, 2 * MB), R=('ws', WS_H, 2 * MB), swap=True, epi=epi_red)]
    return dict(BM=64, BN=64, BK=128, WM=2, WN=2, WK=2, NST=4, regions=[64], jobs=jobs, nwg=256, red=True,
                frag=lambda jn: (0, 32, 0), tilemap=tilemap, grid=256, block=512)
```

```python
from emit import Emitter, v, s, a
from gemm import VAlloc, SRDs, kernel_header, kernel_footer, WS_Q, WS_K, WS_V, WS_CTX, MB, X, ARG, STF
import os

NEG_BIG = '0xf149f2ca'
THR = '0x41c00000'


def gen_attn(E, name):
    kernel_header(E, name)
    V = VAlloc(1)
    sW, sT, sHead, sP, sWG, sQg, sKh = 3, 4, 5, 6, 7, 8, 9
    sTmp = 10
    sKoff, sVoff = 60, 61
    sCnt, sBlk, sQ0 = 62, 63, 64
    sNext, sPar, s4k = 67, 68, 69
    srd = SRDs(E, 12)
    sQ = srd.want('ws', WS_Q, 16 * MB)
    sK = srd.want('ws', WS_K, 16 * MB)
    sV = srd.want('ws', WS_V, 16 * MB)
    sO = srd.want('ws', WS_CTX, 16 * MB)
    WB = 512 * 1792 * 2
    sPf = [srd.want('wo', 0, 4 * MB), srd.want('wg', 0, WB), srd.want('wu', 0, WB), srd.want('wd', 0, WB)]
    assert srd.next <= 40+8
    Lend = f'{name}_end'
    E.I('s_cmp_ge_u32', 's2', 256)
    E.branch('s_cbranch_scc1', Lend)
    E.I('s_and_b32', s(sHead), 's2', 31)
    E.I('s_lshr_b32', s(sP), 's2', 5)
    srd.build()
    vLane, vL31, vHH = V.get(), V.get(), V.get()
    t0, t1, t2, t3 = V.get(), V.get(), V.get(), V.get()
    E.I('v_and_b32', v(vLane), 63, 'v0')
    E.I('v_lshrrev_b32', v(t0), 6, 'v0')
    E.I('v_readfirstlane_b32', s(sW), v(t0))
    E.I('v_and_b32', v(vL31), 31, 'v0')
    E.I('v_bfe_u32', v(vHH), 'v0', 5, 1)
    E.I('s_and_b32', s(sQg), s(sW), 3)
    E.I('s_lshr_b32', s(sKh), s(sW), 2)
    E.I('s_lshl_b32', s(sWG), s(sW), 10)

    vKoff, vVoff = V.get(), V.get()
    E.I('v_lshlrev_b32', v(t0), 4, v(vLane))
    E.I('s_lshl_b32', s(sTmp), s(sHead), 19)
    E.I('s_add_u32', s(sTmp), s(sTmp), s(sWG))
    E.I('v_add_u32', v(vKoff), s(sTmp), v(t0))
    E.I('v_mov_b32', v(vVoff), v(vKoff))
    E.I('s_mov_b32', s(s4k), 4096)

    G = dict(grp=0)

    def dma_k(par):
        out = []
        for t in range(8 if G['grp'] == 0 else 0):
            def go(t=t):
                E.I('s_add_u32', 'm0', s(sWG), par * 32768 + t * 4096)
                E.I('s_add_u32', s(sT), s(sKoff), t * 4096)
                E.I('buffer_load_dwordx4', v(vKoff), s(sK, 4), s(sT), mods='offen lds')
            out.append(go)
        return out

    def dma_v(par):
        out = []
        for t in range(8 if G['grp'] == 0 else 0):
            def go(t=t):
                E.I('s_add_u32', 'm0', s(sWG), 65536 + par * 32768 + t * 4096)
                E.I('s_add_u32', s(sT), s(sVoff), (t >> 1) * 131072 + (t & 1) * 4096)
                E.I('buffer_load_dwordx4', v(vVoff), s(sV, 4), s(sT), mods='offen lds')
            out.append(go)
        return out

    E.I('s_mov_b32', s(sKoff), 0)
    E.I('s_mov_b32', s(sVoff), 0)
    Lnd = name + '_nodma0'
    E.I('s_cmp_ge_u32', s(sW), 4)
    E.branch('s_cbranch_scc1', Lnd)
    for g in dma_k(0):
        g()
    E.label(Lnd)

    vKa, vVa = V.get(), V.get()
    E.I('v_lshlrev_b32', v(t0), 4, v(vLane))
    E.I('s_lshl_b32', s(sTmp), s(sKh), 14)
    E.I('v_add_u32', v(vKa), s(sTmp), v(t0))
    E.I('s_lshl_b32', s(sTmp), s(sKh), 12)
    E.I('s_add_u32', s(sTmp), s(sTmp), 65536)
    E.I('v_add_u32', v(vVa), s(sTmp), v(t0))

    vQ = V.get(32, 4)
    vO = V.get(64, 4)
    vS = [V.get(32, 4), V.get(32, 4)]
    vNM = V.get(16, 4)
    NF = 8
    vF = V.get(4 * NF, 4)
    vM, vL, vL2, vThr, vFloor = V.get(), V.get(), V.get(), V.get(), V.get()
    vQa, vKey, vNB = V.get(), V.get(), V.get()
    vMx = V.get()
    E.I('v_mov_b32', v(vNB), NEG_BIG)
    E.I('v_mov_b32', v(vThr), THR)
    vStamp = V.get()
    E.I('s_mov_b32', 's99', 0)

    def stamp():
        if 'stamp' not in X:
            return
        E.I('s_memtime', 's[100:101]')
        E.wait(lgkm=0)
        E.I('s_and_b32', 'm0', 's99', 63)
        E.nop(2)
        E.I('v_writelane_b32', v(vStamp), 's100', 'm0')
        E.I('s_add_u32', 's99', 's99', 1)
    stamp()
    if 'stamp' in X:
        E.I('s_memrealtime', 's[94:95]')
        E.I('s_memtime', 's[92:93]')
        E.wait(lgkm=0)
    PRE = NF - 1
    FL = int(os.environ.get('FL', '16'))

    def phase(seq, rd, mf, fillers, per):
        for n in range(PRE):
            rd(n)
        tot = len(fillers)
        pos = {getattr(f, 'tag', None): i + 1 for i, f in enumerate(fillers)}
        emitted = [0]

        def upto(k):
            while emitted[0] < k:
                fillers[emitted[0]]()
                emitted[0] += 1
        head = min(tot, per)
        upto(head)
        rest = tot - head
        for n in range(len(seq)):
            if n + PRE < len(seq):
                rd(n + PRE)
            if len(seq[n]) > 2 and seq[n][2] in pos:
                upto(pos[seq[n][2]])
            if 'flip' in X and len(seq) == 32 and n % FL == 0:
                E.I('s_setprio', ((n // FL) + G['grp']) & 1)
            if 'w2' in X:
                if n % 2 == 0:
                    E.wait(lgkm=max(0, min(PRE - 1, len(seq) - 2 - n)))
            else:
                E.wait(lgkm=min(PRE, len(seq) - 1 - n))
            mf(n)
            upto(head + (rest * (n + 1) + len(seq) - 1) // len(seq))

    def qk_items(kpar, sb, czero=False):
        out = []
        for sub in range(2):
            for t in range(8):
                def rd(f, sub=sub, t=t):
                    E.I('ds_read_b128', v(f, 4), v(vKa), mods=f'offset:{kpar * 32768 + sub * 8192 + t * 1024}')

                def mf(f, sub=sub, t=t):
                    c = (0 if czero else v(vNM, 16)) if t == 0 else v(vS[sb] + 16 * sub, 16)
                    E.I('v_mfma_f32_32x32x16_bf16', v(vS[sb] + 16 * sub, 16), v(f, 4), v(vQ + 4 * t, 4), c)
                out.append((rd, mf))
        return out

    def pv_items(vpar, sb):
        out = []
        for u in range(4):
            for dt in range(4):
                def rd(f, u=u, dt=dt):
                    E.I('ds_read_b128', v(f, 4), v(vVa), mods=f'offset:{vpar * 32768 + dt * 8192 + u * 1024}')

                def mf(f, u=u, dt=dt):
                    E.I('v_mfma_f32_32x32x16_bf16', v(vO + 16 * dt, 16), v(f, 4), v(vS[sb] + 8 * u, 4),
                        v(vO + 16 * dt, 16))
                out.append((rd, mf, ('p', u)))
        return out

    def run_items(items, fillers, per):
        phase(items, lambda n: items[n][0](vF + 4 * (n % NF)), lambda n: items[n][1](vF + 4 * (n % NF)), fillers, per)

    def qk_phase(kpar, sb, fillers, per):
        z = [F('v_mov_b32', v(vO + r), 0) for r in range(64)]
        run_items(qk_items(kpar, sb, czero=True), mix(z, fillers, 2, 4), per)

    def pv_phase(vpar, sb, fillers, per):
        run_items(pv_items(vpar, sb), fillers, per)

    def F(op, *ops):
        return lambda: E.I(op, *ops)

    def soft_b(sb, groups=(0, 1, 2, 3)):
        S = vS[sb]
        out = []
        for g in groups:
            for r in range(8):
                out.append(F('v_exp_f32', v(S + 8 * g + r), v(S + 8 * g + r)))
            for d in range(4):
                a0, a1 = S + 8 * g + 2 * d, S + 8 * g + 2 * d + 1
                out.append(F('v_add_f32', v(vL), v(vL), v(a0)))
                out.append(F('v_add_f32', v(vL2), v(vL2), v(a1)))
                out.append(F('v_cvt_pk_bf16_f32', v(S + 8 * g + d), v(a0), v(a1)))
            out[-1].tag = ('p', g)
        return out

    def soft_a(sb, masked):
        S = vS[sb]
        out = []
        if masked:
            for sub in range(2):
                for r in range(16):
                    kk = 32 * sub + (r & 3) + 8 * (r >> 2)
                    out.append(F('v_cmp_ge_i32', 'vcc', v(vKey), kk))
                    out.append(F('v_cndmask_b32', v(S + 16 * sub + r), v(vNB), v(S + 16 * sub + r), 'vcc'))
        out.append(F('v_max3_f32', v(t0), v(S), v(S + 1), v(S + 2)))
        out.append(F('v_max3_f32', v(t1), v(S + 3), v(S + 4), v(S + 5)))
        for r in range(6, 30, 4):
            out.append(F('v_max3_f32', v(t0), v(t0), v(S + r), v(S + r + 1)))
            out.append(F('v_max3_f32', v(t1), v(t1), v(S + r + 2), v(S + r + 3)))
        out.append(F('v_max3_f32', v(t0), v(t0), v(S + 30), v(S + 31)))
        out.append(F('v_max_f32', v(t0), v(t0), v(t1)))
        out.append(F('v_mov_b32', v(t1), v(t0)))
        out.append(F('v_permlane32_swap_b32', v(t0), v(t1)))
        out.append(F('v_max_f32', v(vMx), v(t0), v(t1)))
        return out

    def check(sb, first=False):
        S = vS[sb]
        if first:
            E.I('v_mov_b32', v(vM), v(vMx))
            for r in range(16):
                E.I('v_sub_f32', v(vNM + r), 0, v(vMx))
            for r in range(32):
                E.I('v_sub_f32', v(S + r), v(S + r), v(vMx))
            return
        Lskip = E.newlabel(f'{name}_keep')
        E.I('v_cmp_gt_f32', 'vcc', v(vMx), v(vThr))
        E.branch('s_cbranch_vccz', Lskip)
        E.I('v_max_f32', v(t0), 0, v(vMx))
        E.I('v_sub_f32', v(t1), 0, v(t0))
        E.I('v_exp_f32', v(t1), v(t1))
        E.I('v_add_f32', v(vM), v(vM), v(t0))
        for r in range(16):
            E.I('v_sub_f32', v(vNM + r), 0, v(vM))
        for r in range(32):
            E.I('v_sub_f32', v(S + r), v(S + r), v(t0))
        E.I('v_mul_f32', v(vL), v(vL), v(t1))
        E.I('v_mul_f32', v(vL2), v(vL2), v(t1))
        for r in range(64):
            E.I('v_mul_f32', v(vO + r), v(vO + r), v(t1))
        E.label(Lskip)

    sPfS, sPfO, sPfE = 72, 76, 77
    vPf = V.get()

    def prefetch_setup():
        E.I('v_lshlrev_b32', v(vPf), 4, v(vLane))
        for w in range(4):
            Lw = E.newlabel(f'{name}_pfw')
            if w:
                E.I('s_cmp_lg_u32', s(sW), 4 + w)
                E.branch('s_cbranch_scc1', Lw)
            n = 16 if w == 0 else 7
            for i in range(4):
                E.I('s_mov_b32', s(sPfS + i), s(sPf[w] + i))
            E.I('s_mul_i32', s(sPfO), 's2', n * 1024)
            E.I('s_add_u32', s(sPfE), s(sPfO), (n - 1) * 1024)
            if w:
                E.label(Lw)

    def pf_items():
        def go():
            E.I('s_mov_b32', 'm0', 139264)
            E.I('s_min_u32', s(sT), s(sPfO), s(sPfE))
            E.I('s_add_u32', s(sPfO), s(sPfO), 1024)
            E.I('buffer_load_dwordx4', v(vPf), s(sPfS, 4), s(sT), mods='offen lds')
        return [go, go] if (G['grp'] == 1 and 'nopf' not in X) else []

    def load_q(first):
        if first:
            E.I('s_lshl_b32', s(sTmp + 1), s(sP), 7)
        else:
            E.I('s_sub_u32', s(sTmp + 1), 15, s(sP))
            E.I('s_lshl_b32', s(sTmp + 1), s(sTmp + 1), 7)
        E.I('s_lshl_b32', s(sTmp), s(sQg), 5)
        E.I('s_add_u32', s(sTmp), s(sTmp), s(sTmp + 1))
        E.I('s_lshl_b32', s(sTmp), s(sTmp), 8)
        E.I('v_lshlrev_b32', v(vQa), 4, v(vLane))
        E.I('s_lshl_b32', s(sTmp + 1), s(sHead), 19)
        E.I('s_add_u32', s(sTmp), s(sTmp), s(sTmp + 1))
        E.I('v_add_u32', v(vQa), s(sTmp), v(vQa))
        for t in range(8):
            E.I('buffer_load_dwordx4', v(vQ + 4 * t, 4), v(vQa), s(sQ, 4), s(s4k) if t >= 4 else 0,
                mods=f'offen offset:{1024 * (t & 3)}')

    def mix(fl, d, start, step):
        for n, g in enumerate(d):
            fl.insert(min(len(fl), start + step * n), g)
        return fl

    def body(par, d, masked):
        fl = mix(soft_b(par) + soft_a(par ^ 1, masked), d, 4, 7 if not masked else 10)
        if not masked:
            fl = mix(fl, pf_items(), 10, 30)
        run_items(qk_items(par ^ 1, par ^ 1) + pv_items(par, par), fl, 6)
        stamp()
        stamp()

    def sync(novm=False):
        E.wait(vm=None if novm else 0, lgkm=0)
        E.barrier()

    load_q(True)
    prefetch_setup()
    E.I('s_mov_b32', s(sBlk), 0)
    E.I('s_mov_b32', s(sPar), 0)
    Lfin = name + '_fin'
    E.I('s_cmp_ge_u32', s(sW), 4)
    E.branch('s_cbranch_scc1', f'{name}_blk1p')
    for grp in range(2):
        G['grp'] = grp
        if grp == 1:
            E.raw(f'{name}_blk1p:')
            if 'aprio' in X:
                E.I('s_setprio', 1)
        Lblk = f'{name}_blk{grp}'
        E.label(Lblk)
        E.I('s_sub_u32', s(sTmp), 15, s(sP))
        E.I('s_cmp_eq_u32', s(sBlk), 0)
        E.I('s_cselect_b32', s(sCnt), s(sP), s(sTmp))
        E.I('s_lshl_b32', s(sQ0), s(sCnt), 7)
        E.I('v_mov_b32', v(vL), 0)
        E.I('v_mov_b32', v(vL2), 0)
        E.I('s_lshl_b32', s(sTmp), s(sQg), 5)
        E.I('s_lshl_b32', s(sTmp + 1), s(sKh), 6)
        E.I('s_sub_u32', s(sTmp), s(sTmp), s(sTmp + 1))
        E.I('v_add_u32', v(vKey), s(sTmp), v(vL31))
        E.I('v_lshlrev_b32', v(t0), 2, v(vHH))
        E.I('v_sub_u32', v(vKey), v(vKey), v(t0))

        L = lambda tag, par: f'{name}_{tag}{par}_{grp}'
        E.I('s_cmp_eq_u32', s(sPar), 1)
        E.branch('s_cbranch_scc1', L('pro', 1))
        for par in range(2):
            E.label(L('pro', par))
            sync()
            E.I('s_cmp_eq_u32', s(sCnt), 0)
            E.branch('s_cbranch_scc1', L('pro1', par))
            E.I('s_add_u32', s(sKoff), s(sKoff), 128 * 256)
            qk_phase(par, par, dma_k(par ^ 1) + dma_v(par), 1)
            for f in soft_a(par, False):
                f()
            check(par, first=True)
            E.branch('s_branch', L('loop', par))
            E.label(L('pro1', par))
            E.I('s_mov_b32', s(sKoff), 0)
            qk_phase(par, par, dma_v(par) + dma_k(par ^ 1), 1)
            for f in soft_a(par, True):
                f()
            check(par, first=True)
            E.branch('s_branch', L('epi', par))
        for par in range(2):
            E.label(L('loop', par))
            E.I('s_sub_u32', s(sCnt), s(sCnt), 1)
            stamp()
            sync(novm=(grp == 1))
            stamp()
            E.I('s_cmp_eq_u32', s(sCnt), 0)
            E.branch('s_cbranch_scc1', L('last', par))
            E.I('s_add_u32', s(sKoff), s(sKoff), 128 * 256)
            E.I('s_add_u32', s(sVoff), s(sVoff), 8192)
            body(par, dma_k(par) + dma_v(par ^ 1), False)
            check(par ^ 1)
            E.branch('s_branch', L('loop', par ^ 1))
            E.label(L('last', par))
            E.I('s_mov_b32', s(sKoff), 0)
            E.I('s_add_u32', s(sVoff), s(sVoff), 8192)
            body(par, dma_v(par ^ 1) + dma_k(par), True)
            check(par ^ 1)
            E.branch('s_branch', L('epi', par ^ 1))
        Lmerge = f'{name}_merge{grp}'
        for par in range(2):
            E.label(L('epi', par))
            E.wait(vm=(8 if grp == 0 else None), lgkm=0)
            E.barrier()
            load_q(False)
            pv_phase(par, par, soft_b(par), 22)
            E.I('s_mov_b32', s(sPar), par ^ 1)
            E.I('s_mov_b32', s(sNext), par * 32768)
            E.I('s_mov_b32', s(sVoff), 0)
            if par == 0:
                E.branch('s_branch', Lmerge)
        E.label(Lmerge)
        E.wait(lgkm=0)
        E.barrier()
        E.I('v_add_f32', v(vL), v(vL), v(vL2))
        E.I('v_mov_b32', v(t0), v(vL))
        E.I('v_permlane32_swap_b32', v(vL), v(t0))
        E.I('v_add_f32', v(vL), v(vL), v(t0))
        E.I('s_lshl_b32', s(sTmp), s(sQg), 13)
        E.I('s_add_u32', s(sTmp), s(sTmp), s(sNext))
        E.I('s_lshl_b32', s(sTmp + 1), s(sKh), 16)
        E.I('v_lshlrev_b32', v(t2), 4, v(vLane))
        E.I('v_add_u32', v(t2), s(sTmp), v(t2))
        E.I('v_add_u32', v(t1), s(sTmp + 1), v(t2))
        E.I('s_xor_b32', s(sTmp + 1), s(sTmp + 1), 65536)
        E.I('v_add_u32', v(t2), s(sTmp + 1), v(t2))
        Lk1, Lj = E.newlabel(f'{name}_mk1'), E.newlabel(f'{name}_mj')
        E.I('s_cmp_eq_u32', s(sKh), 1)
        E.branch('s_cbranch_scc1', Lk1)
        for kh in range(2):
            give = vO + 32 * (1 - kh)
            if kh == 1:
                E.label(Lk1)
            for q in range(8):
                E.I('ds_write_b128', v(t1), v(give + 4 * q, 4), mods=f'offset:{1024 * q}')
            if kh == 0:
                E.branch('s_branch', Lj)
        E.label(Lj)
        S0 = vS[0]
        E.I('v_lshlrev_b32', v(t3), 3, v(vLane))
        E.I('s_lshl_b32', s(sTmp), s(sW), 9)
        E.I('s_add_u32', s(sTmp), s(sTmp), 131072)
        E.I('v_add_u32', v(t0), s(sTmp), v(t3))
        E.I('v_mov_b32', v(S0), v(vM))
        E.I('v_mov_b32', v(S0 + 1), v(vL))
        E.I('ds_write_b64', v(t0), v(S0, 2))
        E.I('s_xor_b32', s(sTmp), s(sTmp), 2048)
        E.I('v_add_u32', v(t0), s(sTmp), v(t3))
        E.wait(lgkm=0)
        E.barrier()
        E.I('ds_read_b64', v(S0 + 2, 2), v(t0))
        for q in range(8):
            E.I('ds_read_b128', v(vS[1] + 4 * q, 4), v(t2), mods=f'offset:{1024 * q}')
        E.wait(lgkm=0)
        mm, a1, a2 = S0 + 4, S0 + 5, S0 + 6
        E.I('v_max_f32', v(mm), v(vM), v(S0 + 2))
        E.I('v_sub_f32', v(a1), v(vM), v(mm))
        E.I('v_sub_f32', v(a2), v(S0 + 2), v(mm))
        E.I('v_exp_f32', v(a1), v(a1))
        E.I('v_exp_f32', v(a2), v(a2))
        E.I('v_mul_f32', v(mm), v(vL), v(a1))
        E.I('v_fma_f32', v(mm), v(S0 + 3), v(a2), v(mm))
        E.I('v_rcp_f32', v(mm), v(mm))
        E.I('v_mul_f32', v(a1), v(a1), v(mm))
        E.I('v_mul_f32', v(a2), v(a2), v(mm))
        E.I('s_lshl_b32', s(sTmp), s(sQg), 5)
        E.I('s_add_u32', s(sTmp), s(sTmp), s(sQ0))
        E.I('s_lshl_b32', s(sTmp), s(sTmp), 13)
        E.I('v_lshlrev_b32', v(t0), 4, v(vLane))
        E.I('s_lshl_b32', s(sTmp + 1), s(sHead), 13)
        E.I('s_add_u32', s(sTmp), s(sTmp), s(sTmp + 1))
        E.I('s_lshl_b32', s(sTmp + 1), s(sKh), 12)
        E.I('s_add_u32', s(sTmp), s(sTmp), s(sTmp + 1))
        E.I('v_add_u32', v(t0), s(sTmp), v(t0))
        vPk = vS[0] + 8
        Lk1, Lj = E.newlabel(f'{name}_sk1'), E.newlabel(f'{name}_sj')
        E.I('s_cmp_eq_u32', s(sKh), 1)
        E.branch('s_cbranch_scc1', Lk1)
        for kh in range(2):
            keep = vO + 32 * kh
            if kh == 1:
                E.label(Lk1)
            for r in range(32):
                E.I('v_mul_f32', v(keep + r), v(keep + r), v(a1))
                E.I('v_fma_f32', v(keep + r), v(vS[1] + r), v(a2), v(keep + r))
            for g in range(4):
                for d in range(4):
                    E.I('v_cvt_pk_bf16_f32', v(vPk + 4 * g + d), v(keep + 8 * g + 2 * d), v(keep + 8 * g + 2 * d + 1))
                E.I('buffer_store_dwordx4', v(vPk + 4 * g, 4), v(t0), s(sO, 4), 0, mods=f'offen offset:{1024 * g} {STF}')
            if kh == 0:
                E.branch('s_branch', Lj)
        E.label(Lj)
        E.I('s_add_u32', s(sBlk), s(sBlk), 1)
        E.I('s_cmp_lt_u32', s(sBlk), 2)
        E.branch('s_cbranch_scc1', Lblk)
        if grp == 0:
            E.branch('s_branch', Lfin)
    E.label(Lfin)
    if 'stamp' in X:
        E.I('s_memrealtime', 's[90:91]')
        E.I('s_memtime', 's[88:89]')
        E.wait(lgkm=0)
        E.I('v_writelane_b32', v(vStamp), 's94', 60)
        E.I('v_writelane_b32', v(vStamp), 's90', 61)
        E.I('s_sub_u32', 's90', 's90', 's94')
        E.I('s_sub_u32', 's88', 's88', 's92')
        E.I('v_writelane_b32', v(vStamp), 's90', 62)
        E.I('v_writelane_b32', v(vStamp), 's88', 63)
        E.I('s_load_dwordx2', 's[96:97]', 's[0:1]', ARG['ws'])
        E.wait(lgkm=0)
        E.I('s_add_u32', 's96', 's96', (128 + int(name[1])) << 20)
        E.I('s_addc_u32', 's97', 's97', 0)
        E.I('s_and_b32', 's97', 's97', '0xffff')
        E.I('s_mov_b32', 's98', 1 << 20)
        E.I('s_mov_b32', 's99', '0x00020000')
        E.I('v_lshlrev_b32', v(t0), 2, 'v0')
        E.I('s_lshl_b32', s(sTmp), 's2', 11)
        E.I('v_add_u32', v(t0), s(sTmp), v(t0))
        E.I('buffer_store_dword', v(vStamp), v(t0), 's[96:99]', 0, mods='offen')
    E.label(Lend)
    E.I('s_endpgm')
    kernel_footer(E, name, V.n)
    return 139264 + 1024
```

```python
from emit import Emitter, v, s, a
import os
X = set(os.environ.get('X', '').split(','))
STF = os.environ.get('STF', '')

WS_Q = 0
WS_K = 16 << 20
WS_V = 32 << 20
WS_CTX = 48 << 20
WS_H = 64 << 20
WS_HH = 66 << 20
WS_ST = 76 << 20
WS_XN = 78 << 20
WS_BYTES = 268435456

ARG = dict(x=0, ckv=8, wq=16, wuk=24, wuv=32, wo=40, bx=48, wg=56, wu=64, wd=72, out=80, dbg=88, ws=96)


class VAlloc:
    def __init__(self, start=1):
        self.n = start

    def get(self, cnt=1, align=1):
        self.n = (self.n + align - 1) // align * align
        r = self.n
        self.n += cnt
        return r


def kernel_header(E, name):
    E.raw('.text')
    E.raw(f'.globl {name}')
    E.raw('.p2align 8')
    E.raw(f'.type {name},@function')
    E.raw(f'{name}:')


def kernel_footer(E, name, nvgpr, nsgpr=102):
    nv = (nvgpr + 3) // 4 * 4
    E.raw('.section .rodata,"a"')
    E.raw('.p2align 6')
    E.raw(f'.amdhsa_kernel {name}')
    E.raw(f'  .amdhsa_next_free_vgpr {nv}')
    E.raw(f'  .amdhsa_next_free_sgpr {nsgpr}')
    E.raw(f'  .amdhsa_accum_offset {nv}')
    E.raw('  .amdhsa_group_segment_fixed_size 0')
    E.raw('  .amdhsa_kernarg_size 104')
    E.raw('  .amdhsa_user_sgpr_count 2')
    E.raw('  .amdhsa_user_sgpr_kernarg_segment_ptr 1')
    E.raw('  .amdhsa_system_sgpr_workgroup_id_x 1')
    E.raw('.end_amdhsa_kernel')


class SRDs:
    def __init__(self, E, sbase):
        self.E = E
        self.next = sbase
        self.req = []

    def want(self, arg, off, nbytes):
        r = self.next
        self.next += 4
        self.req.append((r, arg, off, nbytes))
        return r

    def build(self):
        self.start()
        self.finish()

    def start(self):
        for r, arg, off, nbytes in self.req:
            self.E.I('s_load_dwordx2', s(r, 2), 's[0:1]', ARG[arg])

    def finish(self):
        E = self.E
        E.wait(lgkm=0)
        for r, arg, off, nbytes in self.req:
            if off:
                E.I('s_add_u32', s(r), s(r), off)
                E.I('s_addc_u32', s(r + 1), s(r + 1), 0)
            E.I('s_and_b32', s(r + 1), s(r + 1), '0xffff')
            E.I('s_mov_b32', s(r + 2), nbytes)
            E.I('s_mov_b32', s(r + 3), '0x00020000')


def swz_a(RB):
    return (1, 7) if RB == 128 else (0, 15)


def gen_gemm(E, name, cfg):
    BM, BN, BK = cfg['BM'], cfg['BN'], cfg['BK']
    WM, WN, WK = cfg['WM'], cfg['WN'], cfg['WK']
    NST = cfg['NST']
    NW = WM * WN * WK
    jobs = cfg['jobs']
    regions = cfg['regions']
    assert sum(regions) == BN
    TM, TN = BM // WM // 32, BN // WN // 32
    assert (TM == 2 and TN in (2, 4)) or cfg.get('red')
    EMBED = bool(cfg.get('embed'))
    STEPS = BK // 16 // WK
    RBA = BK * 2
    A_BYTES = BM * RBA
    reg_off = []
    o = A_BYTES
    for rw in regions:
        reg_off.append(o)
        o += BK * rw * 2
    STAGE_BYTES = o
    SCR = NST * STAGE_BYTES
    lds_total = SCR + NW * 512
    if cfg.get('red'):
        lds_total = SCR + NW * 2048 + NW * 256
    cfg['lds'] = lds_total
    assert lds_total <= 163840

    if not EMBED:
        kernel_header(E, name)
    V = VAlloc(1)
    sW, sT, sM0, sN0, sWG = 3, 4, 5, 6, 7
    sTmp = 8
    srd = SRDs(E, 12)
    for j in jobs:
        j['sA'] = srd.want(*j['A'])
        j['sW'] = [srd.want(*w) for w in j['W']]
        j['sO'] = srd.want(*j['O'])
        if 'O2' in j:
            j['sO2'] = srd.want(*j['O2'])
        if 'LNX' in j:
            j['sLX'] = srd.want(*j['LNX'][0])
            j['sLO'] = srd.want(*j['LNX'][1])
        if 'R' in j:
            j['sR'] = srd.want(*j['R'])
        if 'ST' in j:
            j['sST'] = srd.want(*j['ST'])
    assert srd.next <= 100

    E.I('s_cmp_ge_u32', 's2', cfg['nwg'])
    Lend = f'{name}_end'
    E.branch('s_cbranch_scc1', Lend)
    srd.start()
    cfg['tilemap'](E, sM0, sN0, sTmp)

    vLane = V.get()
    vL31 = V.get()
    vHH = V.get()
    vT0, vT1, vT2, vT3 = V.get(), V.get(), V.get(), V.get()
    E.I('v_and_b32', v(vLane), 63, 'v0')
    E.I('v_lshrrev_b32', v(vT0), 6, 'v0')
    E.I('v_readfirstlane_b32', s(sW), v(vT0))
    E.I('v_and_b32', v(vL31), 31, 'v0')
    E.I('v_bfe_u32', v(vHH), 'v0', 5, 1)
    sWm, sWn, sWk = 96, 97, 98
    sDel, sM0w = 94, 93
    E.I('s_and_b32', s(sWn), s(sW), WN - 1)
    E.I('s_lshr_b32', s(sTmp), s(sW), {1: 0, 2: 1, 4: 2}[WN])
    E.I('s_and_b32', s(sWm), s(sTmp), WM - 1)
    E.I('s_lshr_b32', s(sWk), s(sTmp), {1: 0, 2: 1, 4: 2, 8: 3}[WM])
    E.I('s_lshl_b32', s(sWG), s(sW), 10)
    if EMBED:
        E.I('s_lshr_b32', s(sTmp), s(sWm), 1)
        E.I('s_mul_i32', s(sTmp), s(sTmp), s(sDel))
        E.I('s_add_u32', s(sM0w), s(sM0), s(sTmp))
        E.I('s_mul_i32', s(sDel), s(sDel), jobs[0]['lda'])
    else:
        E.I('s_mov_b32', s(sM0w), s(sM0))

    RA = 1024 // RBA
    CPR_A = RBA // 16
    SPLIT = bool(cfg.get('split')) and 'nosplit' not in X
    NDW = 4 if SPLIT else NW
    NA = BM // RA // NDW
    assert NA * RA * NDW == BM
    lda_set = sorted(set(j['lda'] for j in jobs))
    vAoff = {}
    sh, mk = swz_a(RBA)
    for lda in lda_set:
        r = V.get()
        vAoff[lda] = r
        E.I('v_lshrrev_b32', v(vT0), CPR_A.bit_length() - 1, v(vLane))
        E.I('s_mul_i32', s(sTmp), s(sW), RA)
        E.I('v_add_u32', v(vT0), s(sTmp), v(vT0))
        E.I('v_lshrrev_b32', v(vT1), sh, v(vT0))
        E.I('v_and_b32', v(vT1), mk, v(vT1))
        E.I('v_and_b32', v(vT2), CPR_A - 1, v(vLane))
        E.I('v_xor_b32', v(vT1), v(vT1), v(vT2))
        if lda < 0:
            assert BK * 64 == NW * 1024
            E.I('v_lshlrev_b32', v(vT2), 4, v(vLane))
            E.I('s_lshr_b32', s(sTmp), s(sM0), 5)
            E.I('s_mul_i32', s(sTmp), s(sTmp), -lda)
            E.I('s_add_u32', s(sTmp), s(sTmp), s(sWG))
            E.I('v_add_u32', v(r), s(sTmp), v(vT2))
            continue
        E.I('v_lshlrev_b32', v(vT1), 4, v(vT1))
        E.I('v_add_u32', v(vT0), s(sM0), v(vT0))
        E.I('s_mov_b32', s(sTmp), lda)
        E.I('v_mul_lo_u32', v(vT0), v(vT0), s(sTmp))
        E.I('v_add_u32', v(r), v(vT0), v(vT1))
    vWoff = {}
    NWD = []
    for ri, rw in enumerate(regions):
        RBW = rw * 2
        RW_ = 1024 // RBW
        CPR_W = RBW // 16
        n = BK // RW_ // NDW
        assert n * RW_ * NDW == BK
        NWD.append(n)
        for ldw in sorted(set(j['ldw'] for j in jobs)):
            r = V.get()
            vWoff[(ri, ldw)] = r
            E.I('v_lshrrev_b32', v(vT0), CPR_W.bit_length() - 1, v(vLane))
            if RBW == 256:
                E.I('v_and_b32', v(vT1), 3, v(vT0))
            else:
                E.I('v_bfe_u32', v(vT1), v(vT0), 1, 1)
            E.I('v_lshlrev_b32', v(vT1), 2, v(vT1))
            E.I('v_and_b32', v(vT2), CPR_W - 1, v(vLane))
            E.I('v_xor_b32', v(vT1), v(vT1), v(vT2))
            E.I('v_lshlrev_b32', v(vT1), 4, v(vT1))
            E.I('s_mul_i32', s(sTmp), s(sW), RW_)
            E.I('v_add_u32', v(vT0), s(sTmp), v(vT0))
            E.I('s_mov_b32', s(sTmp), ldw)
            E.I('v_mul_lo_u32', v(vT0), v(vT0), s(sTmp))
            E.I('v_add_u32', v(vT0), v(vT0), v(vT1))
            E.I('s_lshl_b32', s(sTmp), s(sN0), 1)
            E.I('v_add_u32', v(r), s(sTmp), v(vT0))
            if 'linw' in X:
                E.I('v_lshlrev_b32', v(r), 4, v(vLane))
                E.I('s_mul_i32', s(sTmp), s(sN0), jobs[0]['K'] * 2)
                E.I('s_add_u32', s(sTmp), s(sTmp), s(sWG))
                E.I('v_add_u32', v(r), s(sTmp), v(r))

    stages = []
    for ji, j in enumerate(jobs):
        for k0 in range(0, j['K'], BK):
            stages.append((ji, k0))
    vm = dict(n=0)
    last_dma = {}

    dmaq = []

    GR = dict(grp=0)

    def issue_dma(st, now=False):
        if 'nodma' in X or GR['grp'] == 1:
            last_dma[st] = vm['n']
            return
        ji, k0 = stages[st]
        j = jobs[ji]
        base = (st % NST) * STAGE_BYTES
        groups = []
        for t in range(NA):
            if j['lda'] < 0:
                go_ = k0 * 64 + t * (-j['lda'])
            else:
                go_ = k0 * 2 + t * NDW * RA * j['lda']
            groups.append((base + t * NDW * 1024, go_, vAoff[j['lda']], j['sA'], EMBED and t >= NA // 2))
        for ri, rw in enumerate(regions):
            RW_ = 1024 // (rw * 2)
            for t in range(NWD[ri]):
                groups.append((base + reg_off[ri] + t * NDW * 1024, (k0 + t * NDW * RW_) * ((rw * 2) if 'linw' in X else j['ldw']),
                               vWoff[(ri, j['ldw'])], j['sW'][ri]))
        for n, g in enumerate(groups):
            def go(g=g, lastone=(n == len(groups) - 1)):
                E.I('s_add_u32', 'm0', s(sWG), g[0])
                if len(g) > 4 and g[4]:
                    E.I('s_add_u32', s(sT), s(sDel), g[1])
                else:
                    E.I('s_mov_b32', s(sT), g[1])
                E.I('buffer_load_dwordx4', v(g[2]), s(g[3], 4), s(sT), mods='offen lds')
                vm['n'] += 1
                if lastone:
                    last_dma[st] = vm['n']
            if now:
                go()
            else:
                dmaq.append(go)

    srd.finish()
    if not SPLIT:
        for st in range(min(NST, len(stages))):
            issue_dma(st, now=True)

    if 'LNX' in jobs[0]:
        ln_side_job(E, V, jobs[0], sW, sTmp, vLane, vm)
    PERMW = any(j.get('ln') for j in jobs)
    vXa = [[V.get() for _ in range(TM)] for _ in range(STEPS)]
    E.I('s_lshl_b32', s(sTmp), s(sWm), 6)
    E.I('v_add_u32', v(vT0), s(sTmp), v(vL31))
    E.I('v_lshrrev_b32', v(vT1), sh, v(vT0))
    E.I('v_and_b32', v(vT1), mk, v(vT1))
    E.I('v_mul_u32_u24', v(vT0), RBA, v(vT0))
    LINA = lda_set[0] < 0
    for ks in range(STEPS):
        if LINA:
            assert not PERMW
            E.I('s_mul_i32', s(sTmp), s(sWk), STEPS * 1024)
            E.I('s_mul_i32', s(sTmp + 1), s(sWm), TM * BK * 64)
            E.I('s_add_u32', s(sTmp), s(sTmp), s(sTmp + 1))
            E.I('v_lshlrev_b32', v(vT3), 4, v(vLane))
            for sl in range(TM):
                E.I('s_add_u32', s(sTmp + 1), s(sTmp), ks * 1024 + sl * BK * 64)
                E.I('v_add_u32', v(vXa[ks][sl]), s(sTmp + 1), v(vT3))
            continue
        if PERMW:
            E.I('s_xor_b32', s(sTmp + 1), s(sWm), ks)
        else:
            E.I('s_mov_b32', s(sTmp + 1), ks)
        E.I('s_mul_i32', s(sTmp), s(sWk), STEPS)
        E.I('s_add_u32', s(sTmp), s(sTmp), s(sTmp + 1))
        E.I('s_lshl_b32', s(sTmp), s(sTmp), 1)
        E.I('v_add_u32', v(vT3), s(sTmp), v(vHH))
        E.I('v_xor_b32', v(vT3), v(vT3), v(vT1))
        E.I('v_lshl_add_u32', v(vT3), v(vT3), 4, v(vT0))
        for sl in range(TM):
            if PERMW:
                E.I('s_xor_b32', s(sTmp), s(sWn), sl)
            else:
                E.I('s_mov_b32', s(sTmp), sl)
            E.I('s_mul_i32', s(sTmp), s(sTmp), 32 * RBA)
            E.I('v_add_u32', v(vXa[ks][sl]), s(sTmp), v(vT3))
    perms = sorted(set(bool(j.get('perm')) for j in jobs))
    vWa = {}
    fr = cfg['frag']
    for pm in perms:
        for jn in range(TN):
            ri, cm, cc = fr(jn)
            RBW = regions[ri] * 2
            E.I('v_bfe_u32', v(vT0), v(vLane), 2, 2)
            E.I('v_lshrrev_b32', v(vT1), 5, v(vLane))
            E.I('v_lshlrev_b32', v(vT1), 2 if pm else 3, v(vT1))
            E.I('v_add_u32', v(vT1), v(vT1), v(vT0))
            E.I('s_mul_i32', s(sTmp), s(sWk), 16 * STEPS)
            E.I('v_add_u32', v(vT1), s(sTmp), v(vT1))
            E.I('v_mul_u32_u24', v(vT1), RBW, v(vT1))
            E.I('v_bfe_u32', v(vT2), v(vLane), 4, 1)
            E.I('v_lshlrev_b32', v(vT2), 4, v(vT2))
            E.I('v_and_b32', v(vT3), 3, v(vLane))
            E.I('v_lshl_add_u32', v(vT2), v(vT3), 2, v(vT2))
            E.I('s_mul_i32', s(sTmp), s(sWn), cm)
            E.I('s_add_u32', s(sTmp), s(sTmp), cc)
            E.I('v_add_u32', v(vT2), s(sTmp), v(vT2))
            E.I('v_lshlrev_b32', v(vT2), 1, v(vT2))
            if RBW == 256:
                E.I('v_lshlrev_b32', v(vT3), 6, v(vT0))
            else:
                E.I('v_bfe_u32', v(vT3), v(vT0), 1, 1)
                E.I('v_lshlrev_b32', v(vT3), 6, v(vT3))
            E.I('v_xor_b32', v(vT2), v(vT2), v(vT3))
            E.I('v_add_u32', v(vT1), v(vT1), v(vT2))
            for ks in range(STEPS):
                r = V.get()
                vWa[(pm, jn, ks)] = r
                if PERMW:
                    E.I('s_xor_b32', s(sTmp), s(sWm), ks)
                else:
                    E.I('s_mov_b32', s(sTmp), ks)
                E.I('s_mul_i32', s(sTmp), s(sTmp), 16 * RBW)
                E.I('s_add_u32', s(sTmp), s(sTmp), reg_off[ri])
                E.I('v_add_u32', v(r), s(sTmp), v(vT1))

    vStamp = V.get()
    nst = [0]

    def stamp():
        if 'stamp' not in X:
            return
        E.I('s_memtime', 's[100:101]')
        E.wait(lgkm=0)
        E.I('v_writelane_b32', v(vStamp), 's100', nst[0])
        nst[0] += 1
    stamp()
    acc = V.get(16 * TM * TN, 4)
    fX = [[V.get(4, 4) for _ in range(TM)] for _ in range(2)]
    fW = [[V.get(4, 4) for _ in range(TN)] for _ in range(2)]
    fS = V.get(8, 4)
    anyln = any(j.get('ln') for j in jobs)
    if anyln:
        vS1 = [V.get() for _ in range(TM)]
        vS2 = [V.get() for _ in range(TM)]
        vCS = [V.get() for _ in range(TN)]
        vOnes = V.get()
        vX1 = [V.get() for _ in range(4)]
        vX2 = [V.get() for _ in range(4)]
        vXC = [[V.get() for _ in range(4)] for _ in range(TN)]
        E.I('v_mov_b32', v(vOnes), '0x3f803f80')
    cfg['V'] = V

    def A(i, jn):
        return acc + (i * TN + jn) * 16

    addr_regs = [r for x in vXa for r in x] + list(vWa.values())
    cur_slot = [0]

    def set_slot(slot, queue=None):
        d = (slot - cur_slot[0]) * STAGE_BYTES
        if d:
            for r in addr_regs:
                ins = ('v_add_u32', v(r), d, v(r)) if d > 0 else ('v_subrev_u32', v(r), -d, v(r))
                if queue is None:
                    E.I(*ins)
                else:
                    queue.append(ins)
        cur_slot[0] = slot

    def read_frags(j, ks, setid):
        if 'noread' in X:
            return
        pm = bool(j.get('perm'))
        for i in range(TM):
            E.I('ds_read_b128', v(fX[setid][i], 4), v(vXa[ks][i]))
        for jn in range(TN):
            RBW = regions[fr(jn)[0]] * 2
            for hf in range(2):
                koff = 8 * hf if pm else 4 * hf
                E.I('ds_read_b64_tr_b16', v(fW[setid][jn] + 2 * hf, 2), v(vWa[(pm, jn, ks)]), mods=f'offset:{koff * RBW}')

    if jobs[0].get('extstats'):
        vXS = V.get(16, 4)
        jobs[0]['vXS'] = vXS
        E.I('s_lshl_b32', s(sTmp), s(sWm), 6)
        E.I('s_add_u32', s(sTmp), s(sTmp), s(sM0))
        E.I('v_add_u32', v(vT0), s(sTmp), v(vL31))
        E.I('v_lshlrev_b32', v(vT0), 6, v(vT0))
        E.I('v_lshl_add_u32', v(vT0), v(vHH), 5, v(vT0))
        slot_addr(dict(E=E, sTmp=sTmp, PERMW=PERMW, sWn=sWn), vT0, vT1, 2048)
        for i in range(2):
            for q in range(2):
                E.I('buffer_load_dwordx4', v(vXS + 8 * i + 4 * q, 4), v((vT0, vT1)[i]), s(jobs[0]['sST'], 4), 0,
                    mods=f'offen offset:{16 * q}')
                vm['n'] += 1
    Lg1, Lfin = name + '_g1', name + '_fin'
    if SPLIT:
        E.I('s_cmp_ge_u32', s(sW), 4)
        E.branch('s_cbranch_scc1', Lg1)
    nst0 = nst[0]
    for grp in range(2 if SPLIT else 1):
        GR['grp'] = grp
        if SPLIT:
            vm['n'] = 0
            last_dma.clear()
        cur_slot[0] = 0
        nst[0] = nst0
        if grp == 1:
            E.label(Lg1)
        if SPLIT:
            for st in range(min(NST, len(stages))):
                issue_dma(st, now=True)

        def stage_sync(st):
            while dmaq:
                dmaq.pop(0)()
            if 'nowait' in X:
                E.wait(vm=int(os.environ.get('VMW', '24')))
            else:
                E.wait(vm=(None if grp == 1 else min(63, vm['n'] - last_dma[st])), lgkm=0)
                E.barrier()
            if st >= 1 and st + NST - 1 < len(stages):
                issue_dma(st + NST - 1)
            set_slot(st % NST)

        pending = []
        if cfg.get('prefetch') and 'nopf' not in X and (grp == 1 or not SPLIT):
            vPf = V.get()
            sPfW = 95
            E.I('v_lshlrev_b32', v(vPf), 4, v(vLane))
            if SPLIT:
                E.I('s_lshl_b32', s(sPfW), 's2', 2)
                E.I('s_add_u32', s(sPfW), s(sPfW), s(sW))
                E.I('s_sub_u32', s(sPfW), s(sPfW), 4)
            else:
                E.I('s_lshl_b32', s(sPfW), 's2', 3)
                E.I('s_add_u32', s(sPfW), s(sPfW), s(sW))
            for _ in range(0 if SPLIT else 12):
                pending.append(lambda: None)
            for sr, per in [(x, y * (2 if SPLIT else 1)) for x, y in cfg['prefetch'](jobs)]:
                for i in range(per):
                    def go(sr=sr, per=per, i=i):
                        E.I('s_mov_b32', 'm0', SCR)
                        E.I('s_mul_i32', s(sT), s(sPfW), per * 1024)
                        E.I('s_add_u32', s(sT), s(sT), i * 1024)
                        E.I('buffer_load_dwordx4', v(vPf), s(sr, 4), s(sT), mods='offen lds')
                        vm['n'] += 1
                    pending.append(go)
                    for _ in range(5):
                        pending.append(lambda: None)
        stage_sync(0)
        setid = 0
        read_frags(jobs[stages[0][0]], 0, setid)
        for st, (ji, k0) in enumerate(stages):
            j = jobs[ji]
            first = (k0 == 0)
            lastk = (k0 + BK >= j['K'])
            stamp()
            if first and j.get('ln'):
                for r in vX1 + vX2 + vXC[0] + vXC[1]:
                    E.I('v_mov_b32', v(r), 0)
            for ks in range(STEPS):
                cur = setid
                setid ^= 1
                if ks + 1 < STEPS:
                    read_frags(j, ks + 1, setid)
                    E.wait(lgkm=TM + 2 * TN)
                elif st + 1 < len(stages):
                    stage_sync(st + 1)
                    read_frags(jobs[stages[st + 1][0]], 0, setid)
                else:
                    E.wait(lgkm=0)
                lnq = []
                if j.get('ln') and 'noln' not in X:
                    for q in range(0 if j.get('extstats') else 4):
                        x = fX[cur][0] + q
                        lnq.append(('v_lshlrev_b32', v(vT0), 16, v(x)))
                        lnq.append(('v_and_b32', v(vT1), '0xffff0000', v(x)))
                        lnq.append(('v_add_f32', v(vX1[q & 1]), v(vX1[q & 1]), v(vT0)))
                        lnq.append(('v_add_f32', v(vX1[2 + (q & 1)]), v(vX1[2 + (q & 1)]), v(vT1)))
                        lnq.append(('v_fma_f32', v(vX2[q & 1]), v(vT0), v(vT0), v(vX2[q & 1])))
                        lnq.append(('v_fma_f32', v(vX2[2 + (q & 1)]), v(vT1), v(vT1), v(vX2[2 + (q & 1)])))
                    if ks == 0:
                        for q in range(4):
                            for jj in range(TN):
                                x = fW[cur][jj] + q
                                lnq.append(('v_lshlrev_b32', v(vT2), 16, v(x)))
                                lnq.append(('v_and_b32', v(vT3), '0xffff0000', v(x)))
                                lnq.append(('v_add_f32', v(vXC[jj][q & 1]), v(vXC[jj][q & 1]), v(vT2)))
                                lnq.append(('v_add_f32', v(vXC[jj][2 + (q & 1)]), v(vXC[jj][2 + (q & 1)]), v(vT3)))
                if STEPS >= 2 and ks == STEPS - 2 and st + 1 < len(stages):
                    set_slot((st + 1) % NST, lnq)
                per = (len(lnq) + TM * TN - 1) // (TM * TN)
                for i in range(TM):
                    for jn in range(TN):
                        c = 0 if (first and ks == 0) else v(A(i, jn), 16)
                        if 'nomfma' in X and not (first and ks == 0):
                            pass
                        elif (j['swap'][jn] if isinstance(j['swap'], (list, tuple)) else j['swap']):
                            E.I('v_mfma_f32_32x32x16_bf16', v(A(i, jn), 16), v(fW[cur][jn], 4), v(fX[cur][i], 4), c)
                        else:
                            E.I('v_mfma_f32_32x32x16_bf16', v(A(i, jn), 16), v(fX[cur][i], 4), v(fW[cur][jn], 4), c)
                        for _ in range(2 if TM * TN * STEPS <= 4 else 1):
                            if dmaq:
                                dmaq.pop(0)()
                            elif pending:
                                pending.pop(0)()
                        for _ in range(per):
                            if lnq:
                                E.I(*lnq.pop(0))
            if lastk:
                env = dict(E=E, V=V, j=j, A=A, vL31=vL31, vHH=vHH, vLane=vLane, sWm=sWm, sWn=sWn, sWk=sWk, sW=sW,
                           sM0=sM0w, sN0=sN0, sTmp=sTmp, sT=sT, vT=[vT0, vT1, vT2, vT3], fS=fS, vm=vm,
                           SCR=SCR, NW=NW, TM=TM, TN=TN, PERMW=PERMW, pending=pending, defer=(st + 1 < len(stages) and 'nodefer' not in X))
                if j.get('ln'):
                    env.update(vS1=vS1, vS2=vS2, vCS=vCS)
                    for dst, src in ((vS1[0], vX1), (vS2[0], vX2), (vCS[0], vXC[0]), (vCS[1], vXC[1])):
                        E.I('v_add_f32', v(src[0]), v(src[0]), v(src[1]))
                        E.I('v_add_f32', v(src[2]), v(src[2]), v(src[3]))
                        E.I('v_add_f32', v(dst), v(src[0]), v(src[2]))
                stamp()
                j['epi'](env)
                stamp()
        if SPLIT and grp == 0:
            E.branch('s_branch', Lfin)
    if SPLIT:
        E.label(Lfin)
    if 'stamp' in X:
        E.wait(vm=0)
        stamp()
        E.I('s_load_dwordx2', 's[96:97]', 's[0:1]', ARG['ws'])
        E.wait(lgkm=0)
        E.I('s_add_u32', 's96', 's96', (128 + (6 if EMBED else int(name[1]))) << 20)
        E.I('s_addc_u32', 's97', 's97', 0)
        E.I('s_and_b32', 's97', 's97', '0xffff')
        E.I('s_mov_b32', 's98', 1 << 20)
        E.I('s_mov_b32', 's99', '0x00020000')
        E.I('v_lshlrev_b32', v(vT0), 2, 'v0')
        E.I('s_lshl_b32', s(sTmp), 's2', 11)
        E.I('v_add_u32', v(vT0), s(sTmp), v(vT0))
        E.I('buffer_store_dword', v(vStamp), v(vT0), 's[96:99]', 0, mods='offen')

    if EMBED:
        return lds_total, V.n
    E.label(Lend)
    E.I('s_endpgm')
    kernel_footer(E, name, V.n)
    return lds_total


def wave_sum(E, r, sdst):
    for m in ('row_shr:1', 'row_shr:2', 'row_shr:4', 'row_shr:8'):
        E.I('v_add_f32_dpp', v(r), v(r), v(r), mods=f'{m} row_mask:0xf bank_mask:0xf bound_ctrl:0')
    E.I('v_add_f32_dpp', v(r), v(r), v(r), mods='row_bcast:15 row_mask:0xa bank_mask:0xf')
    E.I('v_add_f32_dpp', v(r), v(r), v(r), mods='row_bcast:31 row_mask:0xc bank_mask:0xf')
    E.I('v_readlane_b32', s(sdst), v(r), 63)


def ln_side_job(E, V, j, sW, sTmp, vLane, vm):
    x = V.get(4, 4)
    f = V.get(8)
    a, t = V.get(), V.get()
    E.I('s_lshl_b32', s(sTmp), 's2', 3)
    E.I('s_add_u32', s(sTmp), s(sTmp), s(sW))
    E.I('s_lshl_b32', s(sTmp), s(sTmp), 10)
    E.I('v_lshlrev_b32', v(a), 4, v(vLane))
    E.I('v_add_u32', v(a), s(sTmp), v(a))
    E.I('buffer_load_dwordx4', v(x, 4), v(a), s(j['sLX'], 4), 0, mods='offen')
    vm['n'] += 1
    E.wait(vm=0)
    for d in range(4):
        E.I('v_lshlrev_b32', v(f + 2 * d), 16, v(x + d))
        E.I('v_and_b32', v(f + 2 * d + 1), '0xffff0000', v(x + d))
    E.I('v_add_f32', v(t), v(f), v(f + 1))
    for r in range(2, 8):
        E.I('v_add_f32', v(t), v(t), v(f + r))
    wave_sum(E, t, sTmp)
    E.I('v_mov_b32', v(t), '0xbb000000')
    E.I('v_mul_f32', v(t), s(sTmp), v(t))
    for r in range(8):
        E.I('v_add_f32', v(f + r), v(f + r), v(t))
    E.I('v_mul_f32', v(t), v(f), v(f))
    for r in range(1, 8):
        E.I('v_fma_f32', v(t), v(f + r), v(f + r), v(t))
    wave_sum(E, t, sTmp)
    E.I('v_mov_b32', v(t), '0x3b000000')
    E.I('v_mul_f32', v(t), s(sTmp), v(t))
    E.I('v_add_f32', v(t), '0x3727c5ac', v(t))
    E.I('v_rsq_f32', v(t), v(t))
    E.I('v_mul_f32', v(t), '0x3e0293ee', v(t))
    for r in range(8):
        E.I('v_mul_f32', v(f + r), v(f + r), v(t))
    for d in range(4):
        E.I('v_cvt_pk_bf16_f32', v(x + d), v(f + 2 * d), v(f + 2 * d + 1))
    E.I('buffer_store_dwordx4', v(x, 4), v(a), s(j['sLO'], 4), 0, mods='offen')
    vm['n'] += 1


def half_sum(E, r, tmp):
    E.I('v_mov_b32', v(tmp), v(r))
    E.I('v_permlane32_swap_b32', v(r), v(tmp))
    E.I('v_add_f32', v(r), v(r), v(tmp))


def ln_prepare(env):
    E, V = env['E'], env['V']
    vS1, vS2, vCS = env['vS1'], env['vS2'], env['vCS']
    t0, t1, t2 = env['vT'][0], env['vT'][1], env['vT'][2]
    sT = env['sTmp']
    SCR = env['SCR']
    half_sum(E, vS1[0], t0)
    half_sum(E, vS2[0], t0)
    for jn in range(env['TN']):
        half_sum(E, vCS[jn], t0)
    E.I('s_lshl_b32', s(sT), s(env['sW']), 9)
    E.I('s_add_u32', s(sT), s(sT), SCR)
    E.I('v_lshlrev_b32', v(t1), 2, v(env['vL31']))
    E.I('v_add_u32', v(t2), s(sT), v(t1))
    E.I('ds_write_b32', v(t2), v(vS1[0]))
    E.I('ds_write_b32', v(t2), v(vS2[0]), mods='offset:128')
    for jn in range(env['TN']):
        E.I('ds_write_b32', v(t2), v(vCS[jn]), mods=f'offset:{256 + 128 * jn}')
    E.wait(lgkm=0)
    E.barrier()
    E.I('s_lshl_b32', s(sT), s(env['sWm']), 10)
    E.I('s_add_u32', s(sT), s(sT), SCR)
    E.I('v_add_u32', v(t2), s(sT), v(t1))
    t3 = env['vT'][3]
    slot_addr(env, t2, t3, 512)
    for i in range(env['TM']):
        if env['j'].get('extstats'):
            xs = env['j']['vXS'] + 8 * i
            for c in range(2):
                dst = (vS1, vS2)[c][i]
                E.I('v_add_f32', v(xs + c), v(xs + c), v(xs + 2 + c))
                E.I('v_add_f32', v(xs + 4 + c), v(xs + 4 + c), v(xs + 6 + c))
                E.I('v_add_f32', v(dst), v(xs + c), v(xs + 4 + c))
                half_sum(E, dst, t0)
            continue
        E.I('ds_read_b32', v(vS1[i]), v((t2, t3)[i]))
        E.I('ds_read_b32', v(vS2[i]), v((t2, t3)[i]), mods='offset:128')
    if 'vCSx' not in env['j']:
        env['j']['vCSx'] = V.get(32, 4)
    if 'pk' not in env['vm']:
        env['vm']['pk'] = V.get(32, 4)
        env['vm']['pa'] = V.get(4)
    cs = env['j']['vCSx']
    cs2 = env['vm']['pk']
    E.I('s_lshl_b32', s(sT), s(env['sWn']), 9)
    E.I('s_add_u32', s(sT), s(sT), SCR + 256)
    E.I('v_lshlrev_b32', v(t1), 4, v(env['vHH']))
    E.I('v_add_u32', v(t1), s(sT), v(t1))
    for wm in range(4):
        dst = cs2 if wm else cs
        for jn in range(env['TN']):
            for q in range(4):
                E.I('ds_read_b128', v(dst + 16 * jn + 4 * q, 4), v(t1), mods=f'offset:{1024 * wm + 128 * jn + 32 * q}')
        if wm:
            E.wait(lgkm=0)
            for r in range(32):
                E.I('v_add_f32', v(cs + r), v(cs + r), v(cs2 + r))
    for i in range(env['TM']):
        E.I('v_mul_f32', v(vS1[i]), '0x3b000000', v(vS1[i]))
        E.I('v_mul_f32', v(vS2[i]), '0x3b000000', v(vS2[i]))
        E.I('v_fma_f32', v(vS2[i]), f'-{v(vS1[i])}', v(vS1[i]), v(vS2[i]))
        E.I('v_max_f32', v(vS2[i]), 0, v(vS2[i]))
        E.I('v_add_f32', v(vS2[i]), '0x3727c5ac', v(vS2[i]))
        E.I('v_rsq_f32', v(vS2[i]), v(vS2[i]))
        E.I('v_mul_f32', v(vS1[i]), v(vS1[i]), v(vS2[i]))
        E.I('v_sub_f32', v(vS1[i]), 0, v(vS1[i]))
    return vS2, vS1, cs


def ln_apply(env, vR, vMR, cs):
    E, A = env['E'], env['A']
    for i in range(env['TM']):
        for jn in range(env['TN']):
            for r in range(16):
                E.I('v_mul_f32', v(A(i, jn) + r), v(A(i, jn) + r), v(vR[i]))
                E.I('v_fma_f32', v(A(i, jn) + r), v(vMR[i]), v(cs + 16 * jn + r), v(A(i, jn) + r))


def pack_store(env, base_reg, vaddr, soff, off, srd, slot=None):
    E, V = env['E'], env['V']
    if env['defer']:
        if 'pk' not in env['vm']:
            env['vm']['pk'] = V.get(32, 4)
            env['vm']['pa'] = V.get(4)
        n = env.setdefault('npk', 0)
        f = env['vm']['pk'] + 8 * n
        env['npk'] = n + 1
        pa = env['vm']['pa'] + (slot if slot is not None else (0 if vaddr == env['vT'][0] else 1))
        E.I('v_mov_b32', v(pa), v(vaddr))
        vaddr = pa
    else:
        f = env['fS']
    for u in range(2):
        for d in range(4):
            E.I('v_cvt_pk_bf16_f32', v(f + 4 * u + d), v(base_reg + 8 * u + 2 * d), v(base_reg + 8 * u + 2 * d + 1))
    for u in range(2):
        if 'nostore' in X:
            continue

        def st(u=u, f=f, vaddr=vaddr):
            E.I('buffer_store_dwordx4', v(f + 4 * u, 4), v(vaddr), s(srd, 4), soff, mods=f'offen offset:{off + 1024 * u} {STF}')
            env['vm']['n'] += 1
        if env['defer']:
            env['pending'].append(st)
        else:
            st()


def lane_part(env, t0):
    E = env['E']
    E.I('v_lshlrev_b32', v(t0), 4, v(env['vLane']))


def slot_addr(env, t0, t1, delta):
    E = env['E']
    sT = env['sTmp']
    if env['PERMW']:
        E.I('s_mul_i32', s(sT), s(env['sWn']), delta)
        E.I('s_sub_u32', s(sT + 1), delta, s(sT))
        E.I('v_add_u32', v(t1), s(sT + 1), v(t0))
        E.I('v_add_u32', v(t0), s(sT), v(t0))
    else:
        E.I('v_add_u32', v(t1), delta, v(t0))


def epi_qk(env):
    E, j, A = env['E'], env['j'], env['A']
    if j.get('ln'):
        vR, vMR, cs = ln_prepare(env)
        for i in range(2):
            E.I('v_mul_f32', v(vR[i]), '0x3e0293ee', v(vR[i]))
            E.I('v_mul_f32', v(vMR[i]), '0x3e0293ee', v(vMR[i]))
        ln_apply(env, vR, vMR, cs)
    t0, t1 = env['vT'][0], env['vT'][1]
    sT = env['sTmp']
    lane_part(env, t0)
    E.I('s_lshl_b32', s(sT), s(env['sWm']), 6)
    E.I('s_add_u32', s(sT), s(sT), s(env['sM0']))
    E.I('s_lshl_b32', s(sT), s(sT), 8)
    E.I('s_lshl_b32', s(sT + 1), s(env['sN0']), 12)
    E.I('s_add_u32', s(sT), s(sT), s(sT + 1))
    E.I('s_lshl_b32', s(sT + 1), s(env['sWn']), 12)
    E.I('s_add_u32', s(sT), s(sT), s(sT + 1))
    E.I('v_add_u32', v(t0), s(sT), v(t0))
    slot_addr(env, t0, t1, 8192)
    for i in range(2):
        for jn in range(2):
            pack_store(env, A(i, jn), (t0, t1)[i], 0, 2048 * jn, j['sO'])


def epi_v(env):
    E, j, A = env['E'], env['j'], env['A']
    t0, t1 = env['vT'][0], env['vT'][1]
    sT = env['sTmp']
    lane_part(env, t0)
    E.I('s_lshl_b32', s(sT), s(env['sN0']), 12)
    E.I('s_lshl_b32', s(sT + 1), s(env['sWm']), 6)
    E.I('s_add_u32', s(sT + 1), s(sT + 1), s(env['sM0']))
    E.I('s_lshl_b32', s(sT + 1), s(sT + 1), 6)
    E.I('s_add_u32', s(sT), s(sT), s(sT + 1))
    E.I('s_lshl_b32', s(sT + 1), s(env['sWn']), 18)
    E.I('s_add_u32', s(sT), s(sT), s(sT + 1))
    E.I('v_add_u32', v(t0), s(sT), v(t0))
    t2 = env['vT'][2]
    slot_addr(env, t0, t2, 2048)
    for jn in range(2):
        if jn:
            E.I('v_add_u32', v(t0), 131072, v(t0))
            E.I('v_add_u32', v(t2), 131072, v(t2))
        for i in range(2):
            pack_store(env, A(i, jn), (t0, t2)[i], 0, 0, j['sO'], slot=2 * jn + i)


def epi_kv(env):
    A = env['A']
    e1 = dict(env)
    e1['A'] = lambda i, jn: A(i, jn)
    epi_qk(e1)
    e2 = dict(env)
    e2['A'] = lambda i, jn: A(i, jn + 2)
    e2['j'] = dict(env['j'], sO=env['j']['sO2'])
    epi_v(e2)


def epi_glu(env):
    E, j, A = env['E'], env['j'], env['A']
    vR, vMR, cs = ln_prepare(env)
    ln_apply(env, vR, vMR, cs)
    t0, t1 = env['vT'][0], env['vT'][1]
    sT = env['sTmp']
    for i in range(2):
        for r in range(16):
            g, u = A(i, 0) + r, A(i, 1) + r
            E.I('v_mul_f32', v(g), '0xbfb8aa3b', v(g))
            E.I('v_exp_f32', v(g), v(g))
            E.I('v_add_f32', v(g), 1.0, v(g))
            E.I('v_rcp_f32', v(g), v(g))
            E.I('v_mul_f32', v(g), v(g), v(u))
    lane_part(env, t0)
    E.I('s_lshl_b32', s(sT), s(env['sWm']), 6)
    E.I('s_add_u32', s(sT), s(sT), s(env['sM0']))
    E.I('s_mul_i32', s(sT), s(sT), 3584)
    E.I('s_lshl_b32', s(sT + 1), s(env['sWn']), 5)
    E.I('s_add_u32', s(sT + 1), s(sT + 1), s(env['sN0']))
    E.I('s_lshl_b32', s(sT + 1), s(sT + 1), 6)
    E.I('s_add_u32', s(sT), s(sT), s(sT + 1))
    E.I('v_add_u32', v(t0), s(sT), v(t0))
    slot_addr(env, t0, t1, 32 * 3584)
    for i in range(2):
        pack_store(env, A(i, 0), (t0, t1)[i], 0, 0, j['sO'])


def epi_red(env):
    E, j, A, V = env['E'], env['j'], env['A'], env['V']
    t0, t1, t2 = env['vT'][0], env['vT'][1], env['vT'][2]
    sT = env['sTmp']
    acc = A(0, 0)
    sWk, sWm, sWn = env['sWk'], env['sWm'], env['sWn']
    res = V.get(4, 2)
    rcv = V.get(8, 4)
    E.I('s_lshl_b32', s(sT), s(sWm), 5)
    E.I('s_add_u32', s(sT), s(sT), s(env['sM0']))
    E.I('v_add_u32', v(t2), s(sT), v(env['vL31']))
    E.I('v_lshlrev_b32', v(t2), 10, v(t2))
    E.I('v_lshl_add_u32', v(t2), v(env['vHH']), 3, v(t2))
    E.I('s_lshl_b32', s(sT), s(sWn), 5)
    E.I('s_add_u32', s(sT), s(sT), s(env['sN0']))
    E.I('s_lshl_b32', s(sT), s(sT), 1)
    E.I('s_lshl_b32', s(sT + 1), s(sWk), 5)
    E.I('s_add_u32', s(sT), s(sT), s(sT + 1))
    E.I('v_add_u32', v(t2), s(sT), v(t2))
    for q in range(2):
        E.I('buffer_load_dwordx2', v(res + 2 * q, 2), v(t2), s(j['sR'], 4), 0, mods=f'offen offset:{16 * q}')
    E.I('v_lshlrev_b32', v(t0), 4, v(env['vLane']))
    E.I('s_lshl_b32', s(sT), s(env['sW']), 11)
    E.I('s_add_u32', s(sT), s(sT), env['SCR'])
    E.I('v_add_u32', v(t1), s(sT), v(t0))
    E.I('s_xor_b32', s(sT + 1), s(env['sW']), 4)
    E.I('s_lshl_b32', s(sT + 1), s(sT + 1), 11)
    E.I('s_add_u32', s(sT + 1), s(sT + 1), env['SCR'])
    E.I('v_add_u32', v(t0), s(sT + 1), v(t0))
    L1, L2 = E.newlabel('red'), E.newlabel('red')
    E.I('s_cmp_eq_u32', s(sWk), 1)
    E.branch('s_cbranch_scc1', L1)
    for wk in range(2):
        if wk:
            E.label(L1)
        for q in range(2):
            E.I('ds_write_b128', v(t1), v(acc + 8 * (1 - wk) + 4 * q, 4), mods=f'offset:{1024 * q}')
        if wk:
            for r in range(8):
                E.I('v_mov_b32', v(acc + r), v(acc + 8 + r))
        else:
            E.branch('s_branch', L2)
    E.label(L2)
    E.wait(lgkm=0)
    E.barrier()
    for q in range(2):
        E.I('ds_read_b128', v(rcv + 4 * q, 4), v(t0), mods=f'offset:{1024 * q}')
    E.wait(vm=0, lgkm=0)
    for q in range(2):
        for d in range(2):
            x = res + 2 * q + d
            a0, a1 = acc + q * 4 + 2 * d, acc + q * 4 + 2 * d + 1
            E.I('v_lshlrev_b32', v(t0), 16, v(x))
            E.I('v_and_b32', v(x), '0xffff0000', v(x))
            E.I('v_add_f32', v(a0), v(a0), v(rcv + q * 4 + 2 * d))
            E.I('v_add_f32', v(a1), v(a1), v(rcv + q * 4 + 2 * d + 1))
            E.I('v_add_f32', v(a0), v(a0), v(t0))
            E.I('v_add_f32', v(a1), v(a1), v(x))
            E.I('v_cvt_pk_bf16_f32', v(x), v(a0), v(a1))
        E.I('buffer_store_dwordx2', v(res + 2 * q, 2), v(t2), s(j['sO'], 4), 0, mods=f'offen offset:{16 * q} {STF}')
    if 'sST' in j:
        s1, s2 = rcv, rcv + 1
        E.I('v_add_f32', v(s1), v(acc), v(acc + 1))
        E.I('v_mul_f32', v(s2), v(acc), v(acc))
        for r in range(1, 8):
            if r > 1:
                E.I('v_add_f32', v(s1), v(s1), v(acc + r))
            E.I('v_fma_f32', v(s2), v(acc + r), v(acc + r), v(s2))
        half_sum(E, s1, t0)
        half_sum(E, s2, t0)
        E.I('v_lshlrev_b32', v(t0), 3, v(env['vL31']))
        E.I('s_lshl_b32', s(sT), s(env['sW']), 8)
        E.I('s_add_u32', s(sT), s(sT), env['SCR'] + 16384)
        E.I('v_add_u32', v(t1), s(sT), v(t0))
        E.I('ds_write_b64', v(t1), v(s1, 2))
        E.wait(lgkm=0)
        E.barrier()
        L3 = E.newlabel('red')
        E.I('s_and_b32', s(sT + 1), s(env['sW']), 5)
        E.I('s_cmp_lg_u32', s(sT + 1), 0)
        E.branch('s_cbranch_scc1', L3)
        for n, off in enumerate((256, 1024, 1280)):
            E.I('ds_read_b64', v(rcv + 2 + 2 * n, 2), v(t1), mods=f'offset:{off}')
        E.wait(lgkm=0)
        for n in range(3):
            E.I('v_add_f32', v(s1), v(s1), v(rcv + 2 + 2 * n))
            E.I('v_add_f32', v(s2), v(s2), v(rcv + 3 + 2 * n))
        E.I('s_lshl_b32', s(sT), s(sWm), 5)
        E.I('s_add_u32', s(sT), s(sT), s(env['sM0']))
        E.I('v_add_u32', v(t0), s(sT), v(env['vL31']))
        E.I('v_lshlrev_b32', v(t0), 6, v(t0))
        E.I('s_lshr_b32', s(sT), s(env['sN0']), 3)
        E.I('v_add_u32', v(t0), s(sT), v(t0))
        E.I('buffer_store_dwordx2', v(s1, 2), v(t0), s(j['sST'], 4), 0, mods='offen')
        E.label(L3)


MB = 1 << 20


def cfg_k1():
    def tilemap(E, sM0, sN0, sT):
        E.I('s_and_b32', s(sN0), 's2', 31)
        E.I('s_lshl_b32', s(sN0), s(sN0), 7)
        E.I('s_lshr_b32', s(sM0), 's2', 5)
        E.I('s_lshl_b32', s(sM0), s(sM0), 8)
    jobs = [
        dict(A=('x', 0, 2 * MB), lda=1024, W=[('wq', 0, 4 * MB)], ldw=8192, K=512, O=('ws', WS_Q, 16 * MB),
             ln=True, swap=True, epi=epi_qk),
        dict(A=('ckv', 0, 2 * MB), lda=1024, W=[('wuk', 0, 4 * MB)], ldw=8192, K=512, O=('ws', WS_K, 16 * MB),
             swap=True, epi=epi_qk),
        dict(A=('ckv', 0, 2 * MB), lda=1024, W=[('wuv', 0, 4 * MB)], ldw=8192, K=512, O=('ws', WS_V, 16 * MB),
             swap=False, epi=epi_v),
    ]
    return dict(BM=256, BN=128, BK=64, WM=4, WN=2, WK=1, NST=3, regions=[128], jobs=jobs, nwg=256, split=False,
                prefetch=lambda J: [(J[1]['sA'], 1), (J[1]['sW'][0], 2), (J[2]['sW'][0], 2)],
                frag=lambda jn: (0, 64, 32 * jn), tilemap=tilemap, grid=256, block=512)


def cfg_k1kv():
    def tilemap(E, sM0, sN0, sT):
        E.I('s_and_b32', s(sN0), 's2', 31)
        E.I('s_lshl_b32', s(sN0), s(sN0), 7)
        E.I('s_lshr_b32', s(sM0), 's2', 5)
        E.I('s_lshl_b32', s(sM0), s(sM0), 8)
    jobs = [dict(A=('ckv', 0, 2 * MB), lda=1024, W=[('wuk', 0, 4 * MB), ('wuv', 0, 4 * MB)], ldw=8192, K=512,
                 O=('ws', WS_K, 16 * MB), O2=('ws', WS_V, 16 * MB), LNX=(('x', 0, 2 * MB), ('ws', WS_XN, 2 * MB)),
                 swap=[True, True, False, False], epi=epi_kv)]
    return dict(BM=256, BN=256, BK=64, WM=4, WN=2, WK=1, NST=2, regions=[128, 128], jobs=jobs, nwg=256,
                frag=lambda jn: (jn >> 1, 64, 32 * (jn & 1)), tilemap=tilemap, grid=256, block=512)


def cfg_qembed():
    def tilemap(E, sM0, sN0, sT):
        E.I('s_and_b32', s(sN0), 's2', 31)
        E.I('s_lshl_b32', s(sN0), s(sN0), 7)
        E.I('s_lshr_b32', s(sM0), 's2', 5)
        E.I('s_lshl_b32', s(sT), s(sM0), 1)
        E.I('s_sub_u32', 's94', 14, s(sT))
        E.I('s_lshl_b32', 's94', 's94', 7)
        E.I('s_lshl_b32', s(sM0), s(sM0), 7)
    jobs = [dict(A=('ws', WS_XN, 2 * MB), lda=1024, W=[('wq', 0, 4 * MB)], ldw=8192, K=512, O=('ws', WS_Q, 16 * MB),
                 swap=True, epi=epi_qk)]
    return dict(BM=256, BN=128, BK=64, WM=4, WN=2, WK=1, NST=3, regions=[128], jobs=jobs, nwg=256, embed=True,
                frag=lambda jn: (0, 64, 32 * jn), tilemap=tilemap, grid=256, block=512)


def cfg_k4():
    def tilemap(E, sM0, sN0, sT):
        E.I('s_mul_hi_u32', s(sM0), 's2', 153391690)
        E.I('s_mul_i32', s(sT), s(sM0), 28)
        E.I('s_sub_u32', s(sN0), 's2', s(sT))
        E.I('s_lshl_b32', s(sN0), s(sN0), 6)
        E.I('s_lshl_b32', s(sM0), s(sM0), 8)
    WB = 512 * 1792 * 2
    jobs = [dict(A=('ws', WS_H, 2 * MB), lda=1024, W=[('wg', 0, WB), ('wu', 0, WB)], ldw=3584, K=512,
                 O=('ws', WS_HH, 2048 * 3584), ST=('ws', WS_ST, 2048 * 64), extstats=True, ln=True, swap=True, epi=epi_glu)]
    return dict(BM=256, BN=128, BK=64, WM=4, WN=2, WK=1, NST=3, regions=[64, 64], jobs=jobs, nwg=224,
                frag=lambda jn: (jn, 32, 0), tilemap=tilemap, grid=224, block=512)


def cfg_red(which):
    def tilemap(E, sM0, sN0, sT):
        E.I('s_lshr_b32', s(sN0), 's2', 3)
        E.I('s_and_b32', s(sN0), s(sN0), 7)
        E.I('s_lshl_b32', s(sN0), s(sN0), 6)
        E.I('s_and_b32', s(sM0), 's2', 7)
        E.I('s_lshl_b32', s(sM0), s(sM0), 2)
        E.I('s_lshr_b32', s(sT), 's2', 6)
        E.I('s_add_u32', s(sM0), s(sM0), s(sT))
        E.I('s_lshl_b32', s(sM0), s(sM0), 6)
    if which == 3:
        jobs = [dict(A=('ws', WS_CTX, 16 * MB), lda=-262144, W=[('wo', 0, 4 * MB)], ldw=1024, K=4096, perm=True,
                     O=('ws', WS_H, 2 * MB), R=('x', 0, 2 * MB), ST=('ws', WS_ST, 2048 * 64), swap=True, epi=epi_red)]
    else:
        jobs = [dict(A=('ws', WS_HH, 2048 * 3584), lda=-114688, W=[('wd', 0, 1792 * 1024)], ldw=1024, K=1792, perm=True,
                     O=('out', 0, 2 * MB), R=('ws', WS_H, 2 * MB), swap=True, epi=epi_red)]
    return dict(BM=64, BN=64, BK=128, WM=2, WN=2, WK=2, NST=4, regions=[64], jobs=jobs, nwg=256, red=True,
                frag=lambda jn: (0, 32, 0), tilemap=tilemap, grid=256, block=512)
```

```python
from emit import Emitter, v, s, a
import os
X = set(os.environ.get('X', '').split(','))
STF = os.environ.get('STF', '')

WS_Q = 0
WS_K = 16 << 20
WS_V = 32 << 20
WS_CTX = 48 << 20
WS_H = 64 << 20
WS_HH = 66 << 20
WS_ST = 76 << 20
WS_XN = 78 << 20
WS_BYTES = 268435456

ARG = dict(x=0, ckv=8, wq=16, wuk=24, wuv=32, wo=40, bx=48, wg=56, wu=64, wd=72, out=80, dbg=88, ws=96)


class VAlloc:
    def __init__(self, start=1):
        self.n = start

    def get(self, cnt=1, align=1):
        self.n = (self.n + align - 1) // align * align
        r = self.n
        self.n += cnt
        return r


def kernel_header(E, name):
    E.raw('.text')
    E.raw(f'.globl {name}')
    E.raw('.p2align 8')
    E.raw(f'.type {name},@function')
    E.raw(f'{name}:')


def kernel_footer(E, name, nvgpr, nsgpr=102):
    nv = (nvgpr + 3) // 4 * 4
    E.raw('.section .rodata,"a"')
    E.raw('.p2align 6')
    E.raw(f'.amdhsa_kernel {name}')
    E.raw(f'  .amdhsa_next_free_vgpr {nv}')
    E.raw(f'  .amdhsa_next_free_sgpr {nsgpr}')
    E.raw(f'  .amdhsa_accum_offset {nv}')
    E.raw('  .amdhsa_group_segment_fixed_size 0')
    E.raw('  .amdhsa_kernarg_size 104')
    E.raw('  .amdhsa_user_sgpr_count 2')
    E.raw('  .amdhsa_user_sgpr_kernarg_segment_ptr 1')
    E.raw('  .amdhsa_system_sgpr_workgroup_id_x 1')
    E.raw('.end_amdhsa_kernel')


class SRDs:
    def __init__(self, E, sbase):
        self.E = E
        self.next = sbase
        self.req = []

    def want(self, arg, off, nbytes):
        r = self.next
        self.next += 4
        self.req.append((r, arg, off, nbytes))
        return r

    def build(self):
        self.start()
        self.finish()

    def start(self):
        for r, arg, off, nbytes in self.req:
            self.E.I('s_load_dwordx2', s(r, 2), 's[0:1]', ARG[arg])

    def finish(self):
        E = self.E
        E.wait(lgkm=0)
        for r, arg, off, nbytes in self.req:
            if off:
                E.I('s_add_u32', s(r), s(r), off)
                E.I('s_addc_u32', s(r + 1), s(r + 1), 0)
            E.I('s_and_b32', s(r + 1), s(r + 1), '0xffff')
            E.I('s_mov_b32', s(r + 2), nbytes)
            E.I('s_mov_b32', s(r + 3), '0x00020000')


def swz_a(RB):
    return (1, 7) if RB == 128 else (0, 15)


def gen_gemm(E, name, cfg):
    BM, BN, BK = cfg['BM'], cfg['BN'], cfg['BK']
    WM, WN, WK = cfg['WM'], cfg['WN'], cfg['WK']
    NST = cfg['NST']
    NW = WM * WN * WK
    jobs = cfg['jobs']
    regions = cfg['regions']
    assert sum(regions) == BN
    TM, TN = BM // WM // 32, BN // WN // 32
    assert (TM == 2 and TN in (2, 4)) or cfg.get('red')
    EMBED = bool(cfg.get('embed'))
    STEPS = BK // 16 // WK
    RBA = BK * 2
    A_BYTES = BM * RBA
    reg_off = []
    o = A_BYTES
    for rw in regions:
        reg_off.append(o)
        o += BK * rw * 2
    STAGE_BYTES = o
    SCR = NST * STAGE_BYTES
    lds_total = SCR + NW * 512
    if cfg.get('red'):
        lds_total = SCR + NW * 2048 + NW * 256
    cfg['lds'] = lds_total
    assert lds_total <= 163840

    if not EMBED:
        kernel_header(E, name)
    V = VAlloc(1)
    sW, sT, sM0, sN0, sWG = 3, 4, 5, 6, 7
    sTmp = 8
    srd = SRDs(E, 12)
    for j in jobs:
        j['sA'] = srd.want(*j['A'])
        j['sW'] = [srd.want(*w) for w in j['W']]
        j['sO'] = srd.want(*j['O'])
        if 'O2' in j:
            j['sO2'] = srd.want(*j['O2'])
        if 'LNX' in j:
            j['sLX'] = srd.want(*j['LNX'][0])
            j['sLO'] = srd.want(*j['LNX'][1])
        if 'R' in j:
            j['sR'] = srd.want(*j['R'])
        if 'ST' in j:
            j['sST'] = srd.want(*j['ST'])
    assert srd.next <= 100

    E.I('s_cmp_ge_u32', 's2', cfg['nwg'])
    Lend = f'{name}_end'
    E.branch('s_cbranch_scc1', Lend)
    srd.start()
    cfg['tilemap'](E, sM0, sN0, sTmp)

    vLane = V.get()
    vL31 = V.get()
    vHH = V.get()
    vT0 = V.get(4, 2)
    vT1, vT2, vT3 = vT0 + 1, vT0 + 2, vT0 + 3
    E.I('v_and_b32', v(vLane), 63, 'v0')
    E.I('v_lshrrev_b32', v(vT0), 6, 'v0')
    E.I('v_readfirstlane_b32', s(sW), v(vT0))
    E.I('v_and_b32', v(vL31), 31, 'v0')
    E.I('v_bfe_u32', v(vHH), 'v0', 5, 1)
    sWm, sWn, sWk = 96, 97, 98
    sDel, sM0w = 94, 93
    E.I('s_and_b32', s(sWn), s(sW), WN - 1)
    E.I('s_lshr_b32', s(sTmp), s(sW), {1: 0, 2: 1, 4: 2}[WN])
    E.I('s_and_b32', s(sWm), s(sTmp), WM - 1)
    E.I('s_lshr_b32', s(sWk), s(sTmp), {1: 0, 2: 1, 4: 2, 8: 3}[WM])
    E.I('s_lshl_b32', s(sWG), s(sW), 10)
    if EMBED:
        E.I('s_lshr_b32', s(sTmp), s(sWm), 1)
        E.I('s_mul_i32', s(sTmp), s(sTmp), s(sDel))
        E.I('s_add_u32', s(sM0w), s(sM0), s(sTmp))
        E.I('s_mul_i32', s(sDel), s(sDel), jobs[0]['lda'])
    else:
        E.I('s_mov_b32', s(sM0w), s(sM0))

    RA = 1024 // RBA
    CPR_A = RBA // 16
    SPLIT = bool(cfg.get('split')) and 'nosplit' not in X
    NDW = 4 if SPLIT else NW
    NA = BM // RA // NDW
    assert NA * RA * NDW == BM
    lda_set = sorted(set(j['lda'] for j in jobs))
    vAoff = {}
    sh, mk = swz_a(RBA)
    for lda in lda_set:
        r = V.get()
        vAoff[lda] = r
        E.I('v_lshrrev_b32', v(vT0), CPR_A.bit_length() - 1, v(vLane))
        E.I('s_mul_i32', s(sTmp), s(sW), RA)
        E.I('v_add_u32', v(vT0), s(sTmp), v(vT0))
        E.I('v_lshrrev_b32', v(vT1), sh, v(vT0))
        E.I('v_and_b32', v(vT1), mk, v(vT1))
        E.I('v_and_b32', v(vT2), CPR_A - 1, v(vLane))
        E.I('v_xor_b32', v(vT1), v(vT1), v(vT2))
        if lda < 0:
            assert BK * 64 == NW * 1024
            E.I('v_lshlrev_b32', v(vT2), 4, v(vLane))
            E.I('s_lshr_b32', s(sTmp), s(sM0), 5)
            E.I('s_mul_i32', s(sTmp), s(sTmp), -lda)
            E.I('s_add_u32', s(sTmp), s(sTmp), s(sWG))
            E.I('v_add_u32', v(r), s(sTmp), v(vT2))
            continue
        E.I('v_lshlrev_b32', v(vT1), 4, v(vT1))
        E.I('v_add_u32', v(vT0), s(sM0), v(vT0))
        E.I('s_mov_b32', s(sTmp), lda)
        E.I('v_mul_lo_u32', v(vT0), v(vT0), s(sTmp))
        E.I('v_add_u32', v(r), v(vT0), v(vT1))
    vWoff = {}
    NWD = []
    for ri, rw in enumerate(regions):
        RBW = rw * 2
        RW_ = 1024 // RBW
        CPR_W = RBW // 16
        n = BK // RW_ // NDW
        assert n * RW_ * NDW == BK
        NWD.append(n)
        for ldw in sorted(set(j['ldw'] for j in jobs)):
            r = V.get()
            vWoff[(ri, ldw)] = r
            E.I('v_lshrrev_b32', v(vT0), CPR_W.bit_length() - 1, v(vLane))
            if RBW == 256:
                E.I('v_and_b32', v(vT1), 3, v(vT0))
            else:
                E.I('v_bfe_u32', v(vT1), v(vT0), 1, 1)
            E.I('v_lshlrev_b32', v(vT1), 2, v(vT1))
            E.I('v_and_b32', v(vT2), CPR_W - 1, v(vLane))
            E.I('v_xor_b32', v(vT1), v(vT1), v(vT2))
            E.I('v_lshlrev_b32', v(vT1), 4, v(vT1))
            E.I('s_mul_i32', s(sTmp), s(sW), RW_)
            E.I('v_add_u32', v(vT0), s(sTmp), v(vT0))
            E.I('s_mov_b32', s(sTmp), ldw)
            E.I('v_mul_lo_u32', v(vT0), v(vT0), s(sTmp))
            E.I('v_add_u32', v(vT0), v(vT0), v(vT1))
            E.I('s_lshl_b32', s(sTmp), s(sN0), 1)
            E.I('v_add_u32', v(r), s(sTmp), v(vT0))
            if 'linw' in X:
                E.I('v_lshlrev_b32', v(r), 4, v(vLane))
                E.I('s_mul_i32', s(sTmp), s(sN0), jobs[0]['K'] * 2)
                E.I('s_add_u32', s(sTmp), s(sTmp), s(sWG))
                E.I('v_add_u32', v(r), s(sTmp), v(r))

    stages = []
    for ji, j in enumerate(jobs):
        for k0 in range(0, j['K'], BK):
            stages.append((ji, k0))
    vm = dict(n=0)
    last_dma = {}

    dmaq = []

    GR = dict(grp=0)

    def issue_dma(st, now=False):
        if 'nodma' in X or GR['grp'] == 1:
            last_dma[st] = vm['n']
            return
        ji, k0 = stages[st]
        j = jobs[ji]
        base = (st % NST) * STAGE_BYTES
        groups = []
        for t in range(NA):
            if j['lda'] < 0:
                go_ = k0 * 64 + t * (-j['lda'])
            else:
                go_ = k0 * 2 + t * NDW * RA * j['lda']
            groups.append((base + t * NDW * 1024, go_, vAoff[j['lda']], j['sA'], EMBED and t >= NA // 2))
        for ri, rw in enumerate(regions):
            RW_ = 1024 // (rw * 2)
            for t in range(NWD[ri]):
                groups.append((base + reg_off[ri] + t * NDW * 1024, (k0 + t * NDW * RW_) * ((rw * 2) if 'linw' in X else j['ldw']),
                               vWoff[(ri, j['ldw'])], j['sW'][ri]))
        for n, g in enumerate(groups):
            def go(g=g, lastone=(n == len(groups) - 1)):
                E.I('s_add_u32', 'm0', s(sWG), g[0])
                if len(g) > 4 and g[4]:
                    E.I('s_add_u32', s(sT), s(sDel), g[1])
                else:
                    E.I('s_mov_b32', s(sT), g[1])
                E.I('buffer_load_dwordx4', v(g[2]), s(g[3], 4), s(sT), mods='offen lds')
                vm['n'] += 1
                if lastone:
                    last_dma[st] = vm['n']
            if now:
                go()
            else:
                dmaq.append(go)

    srd.finish()
    if not SPLIT:
        for st in range(min(NST, len(stages))):
            issue_dma(st, now=True)

    if 'LNX' in jobs[0]:
        ln_side_job(E, V, jobs[0], sW, sTmp, vLane, vm)
    PERMW = any(j.get('ln') for j in jobs)
    sWp = 92
    E.I('s_mul_i32', s(sWp), s(sWm), max(1, STEPS // WM))
    vXa = [[V.get() for _ in range(TM)] for _ in range(STEPS)]
    E.I('s_lshl_b32', s(sTmp), s(sWm), 6)
    E.I('v_add_u32', v(vT0), s(sTmp), v(vL31))
    E.I('v_lshrrev_b32', v(vT1), sh, v(vT0))
    E.I('v_and_b32', v(vT1), mk, v(vT1))
    E.I('v_mul_u32_u24', v(vT0), RBA, v(vT0))
    LINA = lda_set[0] < 0
    for ks in range(STEPS):
        if LINA:
            assert not PERMW
            E.I('s_mul_i32', s(sTmp), s(sWk), STEPS * 1024)
            E.I('s_mul_i32', s(sTmp + 1), s(sWm), TM * BK * 64)
            E.I('s_add_u32', s(sTmp), s(sTmp), s(sTmp + 1))
            E.I('v_lshlrev_b32', v(vT3), 4, v(vLane))
            for sl in range(TM):
                E.I('s_add_u32', s(sTmp + 1), s(sTmp), ks * 1024 + sl * BK * 64)
                E.I('v_add_u32', v(vXa[ks][sl]), s(sTmp + 1), v(vT3))
            continue
        if PERMW:
            E.I('s_xor_b32', s(sTmp + 1), s(sWp), ks)
        else:
            E.I('s_mov_b32', s(sTmp + 1), ks)
        E.I('s_mul_i32', s(sTmp), s(sWk), STEPS)
        E.I('s_add_u32', s(sTmp), s(sTmp), s(sTmp + 1))
        E.I('s_lshl_b32', s(sTmp), s(sTmp), 1)
        E.I('v_add_u32', v(vT3), s(sTmp), v(vHH))
        E.I('v_xor_b32', v(vT3), v(vT3), v(vT1))
        E.I('v_lshl_add_u32', v(vT3), v(vT3), 4, v(vT0))
        for sl in range(TM):
            if PERMW:
                E.I('s_xor_b32', s(sTmp), s(sWn), sl)
            else:
                E.I('s_mov_b32', s(sTmp), sl)
            E.I('s_mul_i32', s(sTmp), s(sTmp), 32 * RBA)
            E.I('v_add_u32', v(vXa[ks][sl]), s(sTmp), v(vT3))
    perms = sorted(set(bool(j.get('perm')) for j in jobs))
    vWa = {}
    fr = cfg['frag']
    for pm in perms:
        for jn in range(TN):
            ri, cm, cc = fr(jn)
            RBW = regions[ri] * 2
            E.I('v_bfe_u32', v(vT0), v(vLane), 2, 2)
            E.I('v_lshrrev_b32', v(vT1), 5, v(vLane))
            E.I('v_lshlrev_b32', v(vT1), 2 if pm else 3, v(vT1))
            E.I('v_add_u32', v(vT1), v(vT1), v(vT0))
            E.I('s_mul_i32', s(sTmp), s(sWk), 16 * STEPS)
            E.I('v_add_u32', v(vT1), s(sTmp), v(vT1))
            E.I('v_mul_u32_u24', v(vT1), RBW, v(vT1))
            E.I('v_bfe_u32', v(vT2), v(vLane), 4, 1)
            E.I('v_lshlrev_b32', v(vT2), 4, v(vT2))
            E.I('v_and_b32', v(vT3), 3, v(vLane))
            E.I('v_lshl_add_u32', v(vT2), v(vT3), 2, v(vT2))
            E.I('s_mul_i32', s(sTmp), s(sWn), cm)
            E.I('s_add_u32', s(sTmp), s(sTmp), cc)
            E.I('v_add_u32', v(vT2), s(sTmp), v(vT2))
            E.I('v_lshlrev_b32', v(vT2), 1, v(vT2))
            if RBW == 256:
                E.I('v_lshlrev_b32', v(vT3), 6, v(vT0))
            else:
                E.I('v_bfe_u32', v(vT3), v(vT0), 1, 1)
                E.I('v_lshlrev_b32', v(vT3), 6, v(vT3))
            E.I('v_xor_b32', v(vT2), v(vT2), v(vT3))
            E.I('v_add_u32', v(vT1), v(vT1), v(vT2))
            for ks in range(STEPS):
                r = V.get()
                vWa[(pm, jn, ks)] = r
                if PERMW:
                    E.I('s_xor_b32', s(sTmp), s(sWp), ks)
                else:
                    E.I('s_mov_b32', s(sTmp), ks)
                E.I('s_mul_i32', s(sTmp), s(sTmp), 16 * RBW)
                E.I('s_add_u32', s(sTmp), s(sTmp), reg_off[ri])
                E.I('v_add_u32', v(r), s(sTmp), v(vT1))

    vStamp = V.get()
    nst = [0]

    def stamp():
        if 'stamp' not in X:
            return
        E.I('s_memtime', 's[100:101]')
        E.wait(lgkm=0)
        E.I('v_writelane_b32', v(vStamp), 's100', nst[0])
        nst[0] += 1
    stamp()
    acc = V.get(16 * TM * TN, 4)
    fX = [[V.get(4, 4) for _ in range(TM)] for _ in range(2)]
    fW = [[V.get(4, 4) for _ in range(TN)] for _ in range(2)]
    fS = V.get(8, 4)
    anyln = any(j.get('ln') for j in jobs)
    if anyln:
        vS1 = [V.get() for _ in range(TM)]
        vS2 = [V.get() for _ in range(TM)]
        vCS = [V.get() for _ in range(TN)]
        vOnes = V.get()
        _b = V.get(8, 2)
        vX1 = [_b, _b + 2, _b + 1, _b + 3]
        vX2 = [_b + 4, _b + 6, _b + 5, _b + 7]
        vXC = [[V.get() for _ in range(4)] for _ in range(TN)]
        E.I('v_mov_b32', v(vOnes), '0x3f803f80')
    cfg['V'] = V

    def A(i, jn):
        return acc + (i * TN + jn) * 16

    addr_regs = [r for x in vXa for r in x] + list(vWa.values())
    cur_slot = [0]

    def set_slot(slot, queue=None):
        d = (slot - cur_slot[0]) * STAGE_BYTES
        if d:
            for r in addr_regs:
                ins = ('v_add_u32', v(r), d, v(r)) if d > 0 else ('v_subrev_u32', v(r), -d, v(r))
                if queue is None:
                    E.I(*ins)
                else:
                    queue.append(ins)
        cur_slot[0] = slot

    def read_frags(j, ks, setid):
        if 'noread' in X:
            return
        pm = bool(j.get('perm'))
        for i in range(TM):
            E.I('ds_read_b128', v(fX[setid][i], 4), v(vXa[ks][i]))
        for jn in range(TN):
            RBW = regions[fr(jn)[0]] * 2
            for hf in range(2):
                koff = 8 * hf if pm else 4 * hf
                E.I('ds_read_b64_tr_b16', v(fW[setid][jn] + 2 * hf, 2), v(vWa[(pm, jn, ks)]), mods=f'offset:{koff * RBW}')

    if jobs[0].get('extstats'):
        vXS = V.get(16, 4)
        jobs[0]['vXS'] = vXS
        E.I('s_lshl_b32', s(sTmp), s(sWm), 6)
        E.I('s_add_u32', s(sTmp), s(sTmp), s(sM0))
        E.I('v_add_u32', v(vT0), s(sTmp), v(vL31))
        E.I('v_lshlrev_b32', v(vT0), 6, v(vT0))
        E.I('v_lshl_add_u32', v(vT0), v(vHH), 5, v(vT0))
        slot_addr(dict(E=E, sTmp=sTmp, PERMW=PERMW, sWn=sWn), vT0, vT1, 2048)
        for i in range(2):
            for q in range(2):
                E.I('buffer_load_dwordx4', v(vXS + 8 * i + 4 * q, 4), v((vT0, vT1)[i]), s(jobs[0]['sST'], 4), 0,
                    mods=f'offen offset:{16 * q}')
                vm['n'] += 1
    Lg1, Lfin = name + '_g1', name + '_fin'
    if SPLIT:
        E.I('s_cmp_ge_u32', s(sW), 4)
        E.branch('s_cbranch_scc1', Lg1)
    nst0 = nst[0]
    for grp in range(2 if SPLIT else 1):
        GR['grp'] = grp
        if SPLIT:
            vm['n'] = 0
            last_dma.clear()
        cur_slot[0] = 0
        nst[0] = nst0
        if grp == 1:
            E.label(Lg1)
        if SPLIT:
            for st in range(min(NST, len(stages))):
                issue_dma(st, now=True)

        def stage_sync(st):
            while dmaq:
                dmaq.pop(0)()
            if 'nowait' in X:
                E.wait(vm=int(os.environ.get('VMW', '24')))
            else:
                E.wait(vm=(None if grp == 1 else min(63, vm['n'] - last_dma[st])), lgkm=0)
                E.barrier()
            if st >= 1 and st + NST - 1 < len(stages):
                issue_dma(st + NST - 1)
            set_slot(st % NST)

        pending = []
        if cfg.get('prefetch') and 'nopf' not in X and (grp == 1 or not SPLIT):
            vPf = V.get()
            sPfW = 95
            E.I('v_lshlrev_b32', v(vPf), 4, v(vLane))
            if SPLIT:
                E.I('s_lshl_b32', s(sPfW), 's2', 2)
                E.I('s_add_u32', s(sPfW), s(sPfW), s(sW))
                E.I('s_sub_u32', s(sPfW), s(sPfW), 4)
            else:
                E.I('s_lshl_b32', s(sPfW), 's2', 3)
                E.I('s_add_u32', s(sPfW), s(sPfW), s(sW))
            for _ in range(0 if SPLIT else 12):
                pending.append(lambda: None)
            for sr, per in [(x, y * (2 if SPLIT else 1)) for x, y in cfg['prefetch'](jobs)]:
                for i in range(per):
                    def go(sr=sr, per=per, i=i):
                        E.I('s_mov_b32', 'm0', SCR)
                        E.I('s_mul_i32', s(sT), s(sPfW), per * 1024)
                        E.I('s_add_u32', s(sT), s(sT), i * 1024)
                        E.I('buffer_load_dwordx4', v(vPf), s(sr, 4), s(sT), mods='offen lds')
                        vm['n'] += 1
                    pending.append(go)
                    for _ in range(5):
                        pending.append(lambda: None)
        stage_sync(0)
        setid = 0
        read_frags(jobs[stages[0][0]], 0, setid)
        for st, (ji, k0) in enumerate(stages):
            j = jobs[ji]
            first = (k0 == 0)
            lastk = (k0 + BK >= j['K'])
            stamp()
            if first and j.get('ln'):
                for r in vX1 + vX2 + vXC[0] + vXC[1]:
                    E.I('v_mov_b32', v(r), 0)
            for ks in range(STEPS):
                cur = setid
                setid ^= 1
                if ks + 1 < STEPS:
                    read_frags(j, ks + 1, setid)
                    E.wait(lgkm=TM + 2 * TN)
                elif st + 1 < len(stages):
                    stage_sync(st + 1)
                    read_frags(jobs[stages[st + 1][0]], 0, setid)
                else:
                    E.wait(lgkm=0)
                lnq = []
                if j.get('ln') and 'noln' not in X:
                    for q in range(0 if j.get('extstats') else 4):
                        x = fX[cur][0] + q
                        lnq.append(('v_lshlrev_b32', v(vT0), 16, v(x)))
                        lnq.append(('v_and_b32', v(vT1), '0xffff0000', v(x)))
                        if 'pk' in X:
                            lnq.append(('v_pk_add_f32', v(vX1[q & 1], 2), v(vX1[q & 1], 2), v(vT0, 2)))
                            lnq.append(('v_pk_fma_f32', v(vX2[q & 1], 2), v(vT0, 2), v(vT0, 2), v(vX2[q & 1], 2)))
                            continue
                        lnq.append(('v_add_f32', v(vX1[q & 1]), v(vX1[q & 1]), v(vT0)))
                        lnq.append(('v_add_f32', v(vX1[2 + (q & 1)]), v(vX1[2 + (q & 1)]), v(vT1)))
                        lnq.append(('v_fma_f32', v(vX2[q & 1]), v(vT0), v(vT0), v(vX2[q & 1])))
                        lnq.append(('v_fma_f32', v(vX2[2 + (q & 1)]), v(vT1), v(vT1), v(vX2[2 + (q & 1)])))
                    if ks < STEPS // WM:
                        for q in range(4):
                            for jj in range(TN):
                                x = fW[cur][jj] + q
                                lnq.append(('v_lshlrev_b32', v(vT2), 16, v(x)))
                                lnq.append(('v_and_b32', v(vT3), '0xffff0000', v(x)))
                                lnq.append(('v_add_f32', v(vXC[jj][q & 1]), v(vXC[jj][q & 1]), v(vT2)))
                                lnq.append(('v_add_f32', v(vXC[jj][2 + (q & 1)]), v(vXC[jj][2 + (q & 1)]), v(vT3)))
                if STEPS >= 2 and ks == STEPS - 2 and st + 1 < len(stages):
                    set_slot((st + 1) % NST, lnq)
                per = (len(lnq) + TM * TN - 1) // (TM * TN)
                for i in range(TM):
                    for jn in range(TN):
                        c = 0 if (first and ks == 0) else v(A(i, jn), 16)
                        if 'nomfma' in X and not (first and ks == 0):
                            pass
                        elif (j['swap'][jn] if isinstance(j['swap'], (list, tuple)) else j['swap']):
                            E.I('v_mfma_f32_32x32x16_bf16', v(A(i, jn), 16), v(fW[cur][jn], 4), v(fX[cur][i], 4), c)
                        else:
                            E.I('v_mfma_f32_32x32x16_bf16', v(A(i, jn), 16), v(fX[cur][i], 4), v(fW[cur][jn], 4), c)
                        for _ in range(2 if TM * TN * STEPS <= 4 else 1):
                            if dmaq:
                                dmaq.pop(0)()
                            elif pending:
                                pending.pop(0)()
                        for _ in range(per):
                            if lnq:
                                E.I(*lnq.pop(0))
            if lastk:
                env = dict(E=E, V=V, j=j, A=A, vL31=vL31, vHH=vHH, vLane=vLane, sWm=sWm, sWn=sWn, sWk=sWk, sW=sW,
                           sM0=sM0w, sN0=sN0, sTmp=sTmp, sT=sT, vT=[vT0, vT1, vT2, vT3], fS=fS, vm=vm,
                           SCR=SCR, NW=NW, TM=TM, TN=TN, WM=WM, PERMW=PERMW, pending=pending, defer=(st + 1 < len(stages) and 'nodefer' not in X))
                if j.get('ln'):
                    env.update(vS1=vS1, vS2=vS2, vCS=vCS)
                    for dst, src in ((vS1[0], vX1), (vS2[0], vX2), (vCS[0], vXC[0]), (vCS[1], vXC[1])):
                        E.I('v_add_f32', v(src[0]), v(src[0]), v(src[1]))
                        E.I('v_add_f32', v(src[2]), v(src[2]), v(src[3]))
                        E.I('v_add_f32', v(dst), v(src[0]), v(src[2]))
                stamp()
                j['epi'](env)
                stamp()
        if SPLIT and grp == 0:
            E.branch('s_branch', Lfin)
    if SPLIT:
        E.label(Lfin)
    if 'stamp' in X:
        E.wait(vm=0)
        stamp()
        E.I('s_load_dwordx2', 's[96:97]', 's[0:1]', ARG['ws'])
        E.wait(lgkm=0)
        E.I('s_add_u32', 's96', 's96', (128 + (6 if EMBED else int(name[1]))) << 20)
        E.I('s_addc_u32', 's97', 's97', 0)
        E.I('s_and_b32', 's97', 's97', '0xffff')
        E.I('s_mov_b32', 's98', 1 << 20)
        E.I('s_mov_b32', 's99', '0x00020000')
        E.I('v_lshlrev_b32', v(vT0), 2, 'v0')
        E.I('s_lshl_b32', s(sTmp), 's2', 11)
        E.I('v_add_u32', v(vT0), s(sTmp), v(vT0))
        E.I('buffer_store_dword', v(vStamp), v(vT0), 's[96:99]', 0, mods='offen')

    if EMBED:
        return lds_total, V.n
    E.label(Lend)
    E.I('s_endpgm')
    kernel_footer(E, name, V.n)
    return lds_total


def wave_sum(E, r, sdst):
    for m in ('row_shr:1', 'row_shr:2', 'row_shr:4', 'row_shr:8'):
        E.I('v_add_f32_dpp', v(r), v(r), v(r), mods=f'{m} row_mask:0xf bank_mask:0xf bound_ctrl:0')
    E.I('v_add_f32_dpp', v(r), v(r), v(r), mods='row_bcast:15 row_mask:0xa bank_mask:0xf')
    E.I('v_add_f32_dpp', v(r), v(r), v(r), mods='row_bcast:31 row_mask:0xc bank_mask:0xf')
    E.I('v_readlane_b32', s(sdst), v(r), 63)


def ln_side_job(E, V, j, sW, sTmp, vLane, vm):
    x = V.get(4, 4)
    f = V.get(8)
    a, t = V.get(), V.get()
    E.I('s_lshl_b32', s(sTmp), 's2', 3)
    E.I('s_add_u32', s(sTmp), s(sTmp), s(sW))
    E.I('s_lshl_b32', s(sTmp), s(sTmp), 10)
    E.I('v_lshlrev_b32', v(a), 4, v(vLane))
    E.I('v_add_u32', v(a), s(sTmp), v(a))
    E.I('buffer_load_dwordx4', v(x, 4), v(a), s(j['sLX'], 4), 0, mods='offen')
    vm['n'] += 1
    E.wait(vm=0)
    for d in range(4):
        E.I('v_lshlrev_b32', v(f + 2 * d), 16, v(x + d))
        E.I('v_and_b32', v(f + 2 * d + 1), '0xffff0000', v(x + d))
    E.I('v_add_f32', v(t), v(f), v(f + 1))
    for r in range(2, 8):
        E.I('v_add_f32', v(t), v(t), v(f + r))
    wave_sum(E, t, sTmp)
    E.I('v_mov_b32', v(t), '0xbb000000')
    E.I('v_mul_f32', v(t), s(sTmp), v(t))
    for r in range(8):
        E.I('v_add_f32', v(f + r), v(f + r), v(t))
    E.I('v_mul_f32', v(t), v(f), v(f))
    for r in range(1, 8):
        E.I('v_fma_f32', v(t), v(f + r), v(f + r), v(t))
    wave_sum(E, t, sTmp)
    E.I('v_mov_b32', v(t), '0x3b000000')
    E.I('v_mul_f32', v(t), s(sTmp), v(t))
    E.I('v_add_f32', v(t), '0x3727c5ac', v(t))
    E.I('v_rsq_f32', v(t), v(t))
    E.I('v_mul_f32', v(t), '0x3e0293ee', v(t))
    for r in range(8):
        E.I('v_mul_f32', v(f + r), v(f + r), v(t))
    for d in range(4):
        E.I('v_cvt_pk_bf16_f32', v(x + d), v(f + 2 * d), v(f + 2 * d + 1))
    E.I('buffer_store_dwordx4', v(x, 4), v(a), s(j['sLO'], 4), 0, mods='offen')
    vm['n'] += 1


def half_sum(E, r, tmp):
    E.I('v_mov_b32', v(tmp), v(r))
    E.I('v_permlane32_swap_b32', v(r), v(tmp))
    E.I('v_add_f32', v(r), v(r), v(tmp))


def ln_prepare(env):
    E, V = env['E'], env['V']
    vS1, vS2, vCS = env['vS1'], env['vS2'], env['vCS']
    t0, t1, t2 = env['vT'][0], env['vT'][1], env['vT'][2]
    sT = env['sTmp']
    SCR = env['SCR']
    half_sum(E, vS1[0], t0)
    half_sum(E, vS2[0], t0)
    for jn in range(env['TN']):
        half_sum(E, vCS[jn], t0)
    E.I('s_lshl_b32', s(sT), s(env['sW']), 9)
    E.I('s_add_u32', s(sT), s(sT), SCR)
    E.I('v_lshlrev_b32', v(t1), 2, v(env['vL31']))
    E.I('v_add_u32', v(t2), s(sT), v(t1))
    E.I('ds_write_b32', v(t2), v(vS1[0]))
    E.I('ds_write_b32', v(t2), v(vS2[0]), mods='offset:128')
    for jn in range(env['TN']):
        E.I('ds_write_b32', v(t2), v(vCS[jn]), mods=f'offset:{256 + 128 * jn}')
    E.wait(lgkm=0)
    E.barrier()
    E.I('s_lshl_b32', s(sT), s(env['sWm']), 10)
    E.I('s_add_u32', s(sT), s(sT), SCR)
    E.I('v_add_u32', v(t2), s(sT), v(t1))
    t3 = env['vT'][3]
    slot_addr(env, t2, t3, 512)
    for i in range(env['TM']):
        if env['j'].get('extstats'):
            xs = env['j']['vXS'] + 8 * i
            for c in range(2):
                dst = (vS1, vS2)[c][i]
                E.I('v_add_f32', v(xs + c), v(xs + c), v(xs + 2 + c))
                E.I('v_add_f32', v(xs + 4 + c), v(xs + 4 + c), v(xs + 6 + c))
                E.I('v_add_f32', v(dst), v(xs + c), v(xs + 4 + c))
                half_sum(E, dst, t0)
            continue
        E.I('ds_read_b32', v(vS1[i]), v((t2, t3)[i]))
        E.I('ds_read_b32', v(vS2[i]), v((t2, t3)[i]), mods='offset:128')
    if 'vCSx' not in env['j']:
        env['j']['vCSx'] = V.get(32, 4)
    if 'pk' not in env['vm']:
        env['vm']['pk'] = V.get(32, 4)
        env['vm']['pa'] = V.get(4)
    cs = env['j']['vCSx']
    cs2 = env['vm']['pk']
    E.I('s_lshl_b32', s(sT), s(env['sWn']), 9)
    E.I('s_add_u32', s(sT), s(sT), SCR + 256)
    E.I('v_lshlrev_b32', v(t1), 4, v(env['vHH']))
    E.I('v_add_u32', v(t1), s(sT), v(t1))
    for wm in range(env['WM']):
        dst = cs2 if wm else cs
        for jn in range(env['TN']):
            for q in range(4):
                E.I('ds_read_b128', v(dst + 16 * jn + 4 * q, 4), v(t1), mods=f'offset:{1024 * wm + 128 * jn + 32 * q}')
        if wm:
            E.wait(lgkm=0)
            for r in range(32):
                E.I('v_add_f32', v(cs + r), v(cs + r), v(cs2 + r))
    for i in range(env['TM']):
        E.I('v_mul_f32', v(vS1[i]), '0x3b000000', v(vS1[i]))
        E.I('v_mul_f32', v(vS2[i]), '0x3b000000', v(vS2[i]))
        E.I('v_fma_f32', v(vS2[i]), f'-{v(vS1[i])}', v(vS1[i]), v(vS2[i]))
        E.I('v_max_f32', v(vS2[i]), 0, v(vS2[i]))
        E.I('v_add_f32', v(vS2[i]), '0x3727c5ac', v(vS2[i]))
        E.I('v_rsq_f32', v(vS2[i]), v(vS2[i]))
        E.I('v_mul_f32', v(vS1[i]), v(vS1[i]), v(vS2[i]))
        E.I('v_sub_f32', v(vS1[i]), 0, v(vS1[i]))
    return vS2, vS1, cs


def ln_apply(env, vR, vMR, cs):
    E, A = env['E'], env['A']
    for i in range(env['TM']):
        for jn in range(env['TN']):
            for r in range(16):
                E.I('v_mul_f32', v(A(i, jn) + r), v(A(i, jn) + r), v(vR[i]))
                E.I('v_fma_f32', v(A(i, jn) + r), v(vMR[i]), v(cs + 16 * jn + r), v(A(i, jn) + r))


def pack_store(env, base_reg, vaddr, soff, off, srd, slot=None):
    E, V = env['E'], env['V']
    if env['defer']:
        if 'pk' not in env['vm']:
            env['vm']['pk'] = V.get(32, 4)
            env['vm']['pa'] = V.get(4)
        n = env.setdefault('npk', 0)
        f = env['vm']['pk'] + 8 * n
        env['npk'] = n + 1
        pa = env['vm']['pa'] + (slot if slot is not None else (0 if vaddr == env['vT'][0] else 1))
        E.I('v_mov_b32', v(pa), v(vaddr))
        vaddr = pa
    else:
        f = env['fS']
    for u in range(2):
        for d in range(4):
            E.I('v_cvt_pk_bf16_f32', v(f + 4 * u + d), v(base_reg + 8 * u + 2 * d), v(base_reg + 8 * u + 2 * d + 1))
    for u in range(2):
        if 'nostore' in X:
            continue

        def st(u=u, f=f, vaddr=vaddr):
            E.I('buffer_store_dwordx4', v(f + 4 * u, 4), v(vaddr), s(srd, 4), soff, mods=f'offen offset:{off + 1024 * u} {STF}')
            env['vm']['n'] += 1
        if env['defer']:
            env['pending'].append(st)
        else:
            st()


def lane_part(env, t0):
    E = env['E']
    E.I('v_lshlrev_b32', v(t0), 4, v(env['vLane']))


def slot_addr(env, t0, t1, delta):
    E = env['E']
    sT = env['sTmp']
    if env['PERMW']:
        E.I('s_mul_i32', s(sT), s(env['sWn']), delta)
        E.I('s_sub_u32', s(sT + 1), delta, s(sT))
        E.I('v_add_u32', v(t1), s(sT + 1), v(t0))
        E.I('v_add_u32', v(t0), s(sT), v(t0))
    else:
        E.I('v_add_u32', v(t1), delta, v(t0))


def epi_qk(env):
    E, j, A = env['E'], env['j'], env['A']
    if j.get('ln'):
        vR, vMR, cs = ln_prepare(env)
        for i in range(2):
            E.I('v_mul_f32', v(vR[i]), '0x3e0293ee', v(vR[i]))
            E.I('v_mul_f32', v(vMR[i]), '0x3e0293ee', v(vMR[i]))
        ln_apply(env, vR, vMR, cs)
    t0, t1 = env['vT'][0], env['vT'][1]
    sT = env['sTmp']
    lane_part(env, t0)
    E.I('s_lshl_b32', s(sT), s(env['sWm']), 6)
    E.I('s_add_u32', s(sT), s(sT), s(env['sM0']))
    E.I('s_lshl_b32', s(sT), s(sT), 8)
    E.I('s_lshl_b32', s(sT + 1), s(env['sN0']), 12)
    E.I('s_add_u32', s(sT), s(sT), s(sT + 1))
    E.I('s_lshl_b32', s(sT + 1), s(env['sWn']), 12)
    E.I('s_add_u32', s(sT), s(sT), s(sT + 1))
    E.I('v_add_u32', v(t0), s(sT), v(t0))
    slot_addr(env, t0, t1, 8192)
    for i in range(2):
        for jn in range(2):
            pack_store(env, A(i, jn), (t0, t1)[i], 0, 2048 * jn, j['sO'])


def epi_v(env):
    E, j, A = env['E'], env['j'], env['A']
    t0, t1 = env['vT'][0], env['vT'][1]
    sT = env['sTmp']
    lane_part(env, t0)
    E.I('s_lshl_b32', s(sT), s(env['sN0']), 12)
    E.I('s_lshl_b32', s(sT + 1), s(env['sWm']), 6)
    E.I('s_add_u32', s(sT + 1), s(sT + 1), s(env['sM0']))
    E.I('s_lshl_b32', s(sT + 1), s(sT + 1), 6)
    E.I('s_add_u32', s(sT), s(sT), s(sT + 1))
    E.I('s_lshl_b32', s(sT + 1), s(env['sWn']), 18)
    E.I('s_add_u32', s(sT), s(sT), s(sT + 1))
    E.I('v_add_u32', v(t0), s(sT), v(t0))
    t2 = env['vT'][2]
    slot_addr(env, t0, t2, 2048)
    for jn in range(2):
        if jn:
            E.I('v_add_u32', v(t0), 131072, v(t0))
            E.I('v_add_u32', v(t2), 131072, v(t2))
        for i in range(2):
            pack_store(env, A(i, jn), (t0, t2)[i], 0, 0, j['sO'], slot=2 * jn + i)


def epi_kv(env):
    A = env['A']
    e1 = dict(env)
    e1['A'] = lambda i, jn: A(i, jn)
    epi_qk(e1)
    e2 = dict(env)
    e2['A'] = lambda i, jn: A(i, jn + 2)
    e2['j'] = dict(env['j'], sO=env['j']['sO2'])
    epi_v(e2)


def epi_glu(env):
    E, j, A = env['E'], env['j'], env['A']
    vR, vMR, cs = ln_prepare(env)
    ln_apply(env, vR, vMR, cs)
    t0, t1 = env['vT'][0], env['vT'][1]
    sT = env['sTmp']
    for i in range(2):
        for r in range(16):
            g, u = A(i, 0) + r, A(i, 1) + r
            E.I('v_mul_f32', v(g), '0xbfb8aa3b', v(g))
            E.I('v_exp_f32', v(g), v(g))
            E.I('v_add_f32', v(g), 1.0, v(g))
            E.I('v_rcp_f32', v(g), v(g))
            E.I('v_mul_f32', v(g), v(g), v(u))
    lane_part(env, t0)
    E.I('s_lshl_b32', s(sT), s(env['sWm']), 6)
    E.I('s_add_u32', s(sT), s(sT), s(env['sM0']))
    E.I('s_mul_i32', s(sT), s(sT), 3584)
    E.I('s_lshl_b32', s(sT + 1), s(env['sWn']), 5)
    E.I('s_add_u32', s(sT + 1), s(sT + 1), s(env['sN0']))
    E.I('s_lshl_b32', s(sT + 1), s(sT + 1), 6)
    E.I('s_add_u32', s(sT), s(sT), s(sT + 1))
    E.I('v_add_u32', v(t0), s(sT), v(t0))
    slot_addr(env, t0, t1, 32 * 3584)
    for i in range(2):
        pack_store(env, A(i, 0), (t0, t1)[i], 0, 0, j['sO'])


def epi_red(env):
    E, j, A, V = env['E'], env['j'], env['A'], env['V']
    t0, t1, t2 = env['vT'][0], env['vT'][1], env['vT'][2]
    sT = env['sTmp']
    acc = A(0, 0)
    sWk, sWm, sWn = env['sWk'], env['sWm'], env['sWn']
    res = V.get(4, 2)
    rcv = V.get(8, 4)
    E.I('s_lshl_b32', s(sT), s(sWm), 5)
    E.I('s_add_u32', s(sT), s(sT), s(env['sM0']))
    E.I('v_add_u32', v(t2), s(sT), v(env['vL31']))
    E.I('v_lshlrev_b32', v(t2), 10, v(t2))
    E.I('v_lshl_add_u32', v(t2), v(env['vHH']), 3, v(t2))
    E.I('s_lshl_b32', s(sT), s(sWn), 5)
    E.I('s_add_u32', s(sT), s(sT), s(env['sN0']))
    E.I('s_lshl_b32', s(sT), s(sT), 1)
    E.I('s_lshl_b32', s(sT + 1), s(sWk), 5)
    E.I('s_add_u32', s(sT), s(sT), s(sT + 1))
    E.I('v_add_u32', v(t2), s(sT), v(t2))
    for q in range(2):
        E.I('buffer_load_dwordx2', v(res + 2 * q, 2), v(t2), s(j['sR'], 4), 0, mods=f'offen offset:{16 * q}')
    E.I('v_lshlrev_b32', v(t0), 4, v(env['vLane']))
    E.I('s_lshl_b32', s(sT), s(env['sW']), 11)
    E.I('s_add_u32', s(sT), s(sT), env['SCR'])
    E.I('v_add_u32', v(t1), s(sT), v(t0))
    E.I('s_xor_b32', s(sT + 1), s(env['sW']), 4)
    E.I('s_lshl_b32', s(sT + 1), s(sT + 1), 11)
    E.I('s_add_u32', s(sT + 1), s(sT + 1), env['SCR'])
    E.I('v_add_u32', v(t0), s(sT + 1), v(t0))
    L1, L2 = E.newlabel('red'), E.newlabel('red')
    E.I('s_cmp_eq_u32', s(sWk), 1)
    E.branch('s_cbranch_scc1', L1)
    for wk in range(2):
        if wk:
            E.label(L1)
        for q in range(2):
            E.I('ds_write_b128', v(t1), v(acc + 8 * (1 - wk) + 4 * q, 4), mods=f'offset:{1024 * q}')
        if wk:
            for r in range(8):
                E.I('v_mov_b32', v(acc + r), v(acc + 8 + r))
        else:
            E.branch('s_branch', L2)
    E.label(L2)
    E.wait(lgkm=0)
    E.barrier()
    for q in range(2):
        E.I('ds_read_b128', v(rcv + 4 * q, 4), v(t0), mods=f'offset:{1024 * q}')
    E.wait(vm=0, lgkm=0)
    for q in range(2):
        for d in range(2):
            x = res + 2 * q + d
            a0, a1 = acc + q * 4 + 2 * d, acc + q * 4 + 2 * d + 1
            E.I('v_lshlrev_b32', v(t0), 16, v(x))
            E.I('v_and_b32', v(x), '0xffff0000', v(x))
            E.I('v_add_f32', v(a0), v(a0), v(rcv + q * 4 + 2 * d))
            E.I('v_add_f32', v(a1), v(a1), v(rcv + q * 4 + 2 * d + 1))
            E.I('v_add_f32', v(a0), v(a0), v(t0))
            E.I('v_add_f32', v(a1), v(a1), v(x))
            E.I('v_cvt_pk_bf16_f32', v(x), v(a0), v(a1))
        E.I('buffer_store_dwordx2', v(res + 2 * q, 2), v(t2), s(j['sO'], 4), 0, mods=f'offen offset:{16 * q} {STF}')
    if 'sST' in j:
        for d in range(4):
            E.I('v_lshlrev_b32', v(acc + 2 * d), 16, v(res + d))
            E.I('v_and_b32', v(acc + 2 * d + 1), '0xffff0000', v(res + d))
        s1, s2 = rcv, rcv + 1
        E.I('v_add_f32', v(s1), v(acc), v(acc + 1))
        E.I('v_mul_f32', v(s2), v(acc), v(acc))
        for r in range(1, 8):
            if r > 1:
                E.I('v_add_f32', v(s1), v(s1), v(acc + r))
            E.I('v_fma_f32', v(s2), v(acc + r), v(acc + r), v(s2))
        half_sum(E, s1, t0)
        half_sum(E, s2, t0)
        E.I('v_lshlrev_b32', v(t0), 3, v(env['vL31']))
        E.I('s_lshl_b32', s(sT), s(env['sW']), 8)
        E.I('s_add_u32', s(sT), s(sT), env['SCR'] + 16384)
        E.I('v_add_u32', v(t1), s(sT), v(t0))
        E.I('ds_write_b64', v(t1), v(s1, 2))
        E.wait(lgkm=0)
        E.barrier()
        L3 = E.newlabel('red')
        E.I('s_and_b32', s(sT + 1), s(env['sW']), 5)
        E.I('s_cmp_lg_u32', s(sT + 1), 0)
        E.branch('s_cbranch_scc1', L3)
        for n, off in enumerate((256, 1024, 1280)):
            E.I('ds_read_b64', v(rcv + 2 + 2 * n, 2), v(t1), mods=f'offset:{off}')
        E.wait(lgkm=0)
        for n in range(3):
            E.I('v_add_f32', v(s1), v(s1), v(rcv + 2 + 2 * n))
            E.I('v_add_f32', v(s2), v(s2), v(rcv + 3 + 2 * n))
        E.I('s_lshl_b32', s(sT), s(sWm), 5)
        E.I('s_add_u32', s(sT), s(sT), s(env['sM0']))
        E.I('v_add_u32', v(t0), s(sT), v(env['vL31']))
        E.I('v_lshlrev_b32', v(t0), 6, v(t0))
        E.I('s_lshr_b32', s(sT), s(env['sN0']), 3)
        E.I('v_add_u32', v(t0), s(sT), v(t0))
        E.I('buffer_store_dwordx2', v(s1, 2), v(t0), s(j['sST'], 4), 0, mods='offen')
        E.label(L3)


MB = 1 << 20


def cfg_k1():
    def tilemap(E, sM0, sN0, sT):
        E.I('s_and_b32', s(sN0), 's2', 31)
        E.I('s_lshl_b32', s(sN0), s(sN0), 7)
        E.I('s_lshr_b32', s(sM0), 's2', 5)
        E.I('s_lshl_b32', s(sM0), s(sM0), 8)
    jobs = [
        dict(A=('x', 0, 2 * MB), lda=1024, W=[('wq', 0, 4 * MB)], ldw=8192, K=512, O=('ws', WS_Q, 16 * MB),
             ln=True, swap=True, epi=epi_qk),
        dict(A=('ckv', 0, 2 * MB), lda=1024, W=[('wuk', 0, 4 * MB)], ldw=8192, K=512, O=('ws', WS_K, 16 * MB),
             swap=True, epi=epi_qk),
        dict(A=('ckv', 0, 2 * MB), lda=1024, W=[('wuv', 0, 4 * MB)], ldw=8192, K=512, O=('ws', WS_V, 16 * MB),
             swap=False, epi=epi_v),
    ]
    return dict(BM=256, BN=128, BK=64, WM=4, WN=2, WK=1, NST=3, regions=[128], jobs=jobs, nwg=256, split=False,
                prefetch=lambda J: [(J[1]['sA'], 1), (J[1]['sW'][0], 2), (J[2]['sW'][0], 2)],
                frag=lambda jn: (0, 64, 32 * jn), tilemap=tilemap, grid=256, block=512)


def cfg_k1kv():
    def tilemap(E, sM0, sN0, sT):
        E.I('s_and_b32', s(sN0), 's2', 31)
        E.I('s_lshl_b32', s(sN0), s(sN0), 7)
        E.I('s_lshr_b32', s(sM0), 's2', 5)
        E.I('s_lshl_b32', s(sM0), s(sM0), 8)
    jobs = [dict(A=('ckv', 0, 2 * MB), lda=1024, W=[('wuk', 0, 4 * MB), ('wuv', 0, 4 * MB)], ldw=8192, K=512,
                 O=('ws', WS_K, 16 * MB), O2=('ws', WS_V, 16 * MB), LNX=(('x', 0, 2 * MB), ('ws', WS_XN, 2 * MB)),
                 swap=[True, True, False, False], epi=epi_kv)]
    return dict(BM=256, BN=256, BK=64, WM=4, WN=2, WK=1, NST=2, regions=[128, 128], jobs=jobs, nwg=256,
                frag=lambda jn: (jn >> 1, 64, 32 * (jn & 1)), tilemap=tilemap, grid=256, block=512)


def cfg_qembed():
    def tilemap(E, sM0, sN0, sT):
        E.I('s_and_b32', s(sN0), 's2', 31)
        E.I('s_lshl_b32', s(sN0), s(sN0), 7)
        E.I('s_lshr_b32', s(sM0), 's2', 5)
        E.I('s_lshl_b32', s(sT), s(sM0), 1)
        E.I('s_sub_u32', 's94', 14, s(sT))
        E.I('s_lshl_b32', 's94', 's94', 7)
        E.I('s_lshl_b32', s(sM0), s(sM0), 7)
    jobs = [dict(A=('ws', WS_XN, 2 * MB), lda=1024, W=[('wq', 0, 4 * MB)], ldw=8192, K=512, O=('ws', WS_Q, 16 * MB),
                 swap=True, epi=epi_qk)]
    return dict(BM=256, BN=128, BK=64, WM=4, WN=2, WK=1, NST=3, regions=[128], jobs=jobs, nwg=256, embed=True,
                frag=lambda jn: (0, 64, 32 * jn), tilemap=tilemap, grid=256, block=512)


def cfg_k4():
    small = 'k4small' in X

    def tilemap(E, sM0, sN0, sT):
        if small:
            E.I('s_lshr_b32', s(sN0), 's2', 4)
            E.I('s_lshl_b32', s(sN0), s(sN0), 6)
            E.I('s_and_b32', s(sM0), 's2', 7)
            E.I('s_lshl_b32', s(sM0), s(sM0), 1)
            E.I('s_bfe_u32', s(sT), 's2', 0x10003)
            E.I('s_add_u32', s(sM0), s(sM0), s(sT))
            E.I('s_lshl_b32', s(sM0), s(sM0), 7)
            return
        E.I('s_lshr_b32', s(sN0), 's2', 3)
        E.I('s_lshl_b32', s(sN0), s(sN0), 6)
        E.I('s_and_b32', s(sM0), 's2', 7)
        E.I('s_lshl_b32', s(sM0), s(sM0), 8)
    WB = 512 * 1792 * 2
    jobs = [dict(A=('ws', WS_H, 2 * MB), lda=1024, W=[('wg', 0, WB), ('wu', 0, WB)], ldw=3584, K=512,
                 O=('ws', WS_HH, 2048 * 3584), ST=('ws', WS_ST, 2048 * 64), extstats=True, ln=True, swap=True, epi=epi_glu)]
    if small:
        return dict(BM=128, BN=128, BK=64, WM=2, WN=2, WK=1, NST=2, regions=[64, 64], jobs=jobs, nwg=448,
                    frag=lambda jn: (jn, 32, 0), tilemap=tilemap, grid=448, block=256)
    return dict(BM=256, BN=128, BK=64, WM=4, WN=2, WK=1, NST=3, regions=[64, 64], jobs=jobs, nwg=224,
                frag=lambda jn: (jn, 32, 0), tilemap=tilemap, grid=224, block=512)


def cfg_red(which):
    def tilemap(E, sM0, sN0, sT):
        E.I('s_lshr_b32', s(sN0), 's2', 3)
        E.I('s_and_b32', s(sN0), s(sN0), 7)
        E.I('s_lshl_b32', s(sN0), s(sN0), 6)
        E.I('s_and_b32', s(sM0), 's2', 7)
        E.I('s_lshl_b32', s(sM0), s(sM0), 2)
        E.I('s_lshr_b32', s(sT), 's2', 6)
        E.I('s_add_u32', s(sM0), s(sM0), s(sT))
        E.I('s_lshl_b32', s(sM0), s(sM0), 6)
    if which == 3:
        jobs = [dict(A=('ws', WS_CTX, 16 * MB), lda=-262144, W=[('wo', 0, 4 * MB)], ldw=1024, K=4096, perm=True,
                     O=('ws', WS_H, 2 * MB), R=('x', 0, 2 * MB), ST=('ws', WS_ST, 2048 * 64), swap=True, epi=epi_red)]
    else:
        jobs = [dict(A=('ws', WS_HH, 2048 * 3584), lda=-114688, W=[('wd', 0, 1792 * 1024)], ldw=1024, K=1792, perm=True,
                     O=('out', 0, 2 * MB), R=('ws', WS_H, 2 * MB), swap=True, epi=epi_red)]
    return dict(BM=64, BN=64, BK=128, WM=2, WN=2, WK=2, NST=4, regions=[64], jobs=jobs, nwg=256, red=True,
                frag=lambda jn: (0, 32, 0), tilemap=tilemap, grid=256, block=512)
```

```python
from emit import Emitter, v, s, a
import os
X = set(os.environ.get('X', '').split(','))
STF = os.environ.get('STF', '')

WS_Q = 0
WS_K = 16 << 20
WS_V = 32 << 20
WS_CTX = 48 << 20
WS_H = 64 << 20
WS_HH = 66 << 20
WS_ST = 76 << 20
WS_XN = 78 << 20
WS_BYTES = 268435456

ARG = dict(x=0, ckv=8, wq=16, wuk=24, wuv=32, wo=40, bx=48, wg=56, wu=64, wd=72, out=80, dbg=88, ws=96)


class VAlloc:
    def __init__(self, start=1):
        self.n = start

    def get(self, cnt=1, align=1):
        self.n = (self.n + align - 1) // align * align
        r = self.n
        self.n += cnt
        return r


def kernel_header(E, name):
    E.raw('.text')
    E.raw(f'.globl {name}')
    E.raw('.p2align 8')
    E.raw(f'.type {name},@function')
    E.raw(f'{name}:')


def kernel_footer(E, name, nvgpr, nsgpr=102):
    nv = (nvgpr + 3) // 4 * 4
    E.raw('.section .rodata,"a"')
    E.raw('.p2align 6')
    E.raw(f'.amdhsa_kernel {name}')
    E.raw(f'  .amdhsa_next_free_vgpr {nv}')
    E.raw(f'  .amdhsa_next_free_sgpr {nsgpr}')
    E.raw(f'  .amdhsa_accum_offset {nv}')
    E.raw('  .amdhsa_group_segment_fixed_size 0')
    E.raw('  .amdhsa_kernarg_size 104')
    E.raw('  .amdhsa_user_sgpr_count 2')
    E.raw('  .amdhsa_user_sgpr_kernarg_segment_ptr 1')
    E.raw('  .amdhsa_system_sgpr_workgroup_id_x 1')
    E.raw('.end_amdhsa_kernel')


class SRDs:
    def __init__(self, E, sbase):
        self.E = E
        self.next = sbase
        self.req = []

    def want(self, arg, off, nbytes):
        r = self.next
        self.next += 4
        self.req.append((r, arg, off, nbytes))
        return r

    def build(self):
        self.start()
        self.finish()

    def start(self):
        for r, arg, off, nbytes in self.req:
            self.E.I('s_load_dwordx2', s(r, 2), 's[0:1]', ARG[arg])

    def finish(self):
        E = self.E
        E.wait(lgkm=0)
        for r, arg, off, nbytes in self.req:
            if off:
                E.I('s_add_u32', s(r), s(r), off)
                E.I('s_addc_u32', s(r + 1), s(r + 1), 0)
            E.I('s_and_b32', s(r + 1), s(r + 1), '0xffff')
            E.I('s_mov_b32', s(r + 2), nbytes)
            E.I('s_mov_b32', s(r + 3), '0x00020000')


def swz_a(RB):
    return (1, 7) if RB == 128 else (0, 15)


def gen_gemm(E, name, cfg):
    BM, BN, BK = cfg['BM'], cfg['BN'], cfg['BK']
    WM, WN, WK = cfg['WM'], cfg['WN'], cfg['WK']
    NST = cfg['NST']
    NW = WM * WN * WK
    jobs = cfg['jobs']
    regions = cfg['regions']
    assert sum(regions) == BN
    TM, TN = BM // WM // 32, BN // WN // 32
    assert (TM == 2 and TN in (2, 4)) or cfg.get('red')
    EMBED = bool(cfg.get('embed'))
    STEPS = BK // 16 // WK
    RBA = BK * 2
    A_BYTES = BM * RBA
    reg_off = []
    o = A_BYTES
    for rw in regions:
        reg_off.append(o)
        o += BK * rw * 2
    STAGE_BYTES = o
    SCR = NST * STAGE_BYTES
    lds_total = SCR + NW * 768
    if cfg.get('red'):
        lds_total = SCR + NW * 2048 + NW * 256
    cfg['lds'] = lds_total
    assert lds_total <= 163840

    if not EMBED:
        kernel_header(E, name)
    V = VAlloc(1)
    sW, sT, sM0, sN0, sWG = 3, 4, 5, 6, 7
    sTmp = 8
    srd = SRDs(E, 12)
    for j in jobs:
        j['sA'] = srd.want(*j['A'])
        j['sW'] = [srd.want(*w) for w in j['W']]
        j['sO'] = srd.want(*j['O'])
        if 'O2' in j:
            j['sO2'] = srd.want(*j['O2'])
        if 'LNX' in j:
            j['sLX'] = srd.want(*j['LNX'][0])
            j['sLO'] = srd.want(*j['LNX'][1])
        if 'R' in j:
            j['sR'] = srd.want(*j['R'])
        if 'ST' in j:
            j['sST'] = srd.want(*j['ST'])
    assert srd.next <= 100

    E.I('s_cmp_ge_u32', 's2', cfg['nwg'])
    Lend = f'{name}_end'
    E.branch('s_cbranch_scc1', Lend)
    srd.start()
    cfg['tilemap'](E, sM0, sN0, sTmp)

    vLane = V.get()
    vL31 = V.get()
    vHH = V.get()
    vT0 = V.get(4, 2)
    vT1, vT2, vT3 = vT0 + 1, vT0 + 2, vT0 + 3
    E.I('v_and_b32', v(vLane), 63, 'v0')
    E.I('v_lshrrev_b32', v(vT0), 6, 'v0')
    E.I('v_readfirstlane_b32', s(sW), v(vT0))
    E.I('v_and_b32', v(vL31), 31, 'v0')
    E.I('v_bfe_u32', v(vHH), 'v0', 5, 1)
    sWm, sWn, sWk = 96, 97, 98
    sDel, sM0w = 94, 93
    E.I('s_and_b32', s(sWn), s(sW), WN - 1)
    E.I('s_lshr_b32', s(sTmp), s(sW), {1: 0, 2: 1, 4: 2}[WN])
    E.I('s_and_b32', s(sWm), s(sTmp), WM - 1)
    E.I('s_lshr_b32', s(sWk), s(sTmp), {1: 0, 2: 1, 4: 2, 8: 3}[WM])
    E.I('s_lshl_b32', s(sWG), s(sW), 10)
    if EMBED:
        E.I('s_lshr_b32', s(sTmp), s(sWm), 1)
        E.I('s_mul_i32', s(sTmp), s(sTmp), s(sDel))
        E.I('s_add_u32', s(sM0w), s(sM0), s(sTmp))
        E.I('s_mul_i32', s(sDel), s(sDel), jobs[0]['lda'])
    else:
        E.I('s_mov_b32', s(sM0w), s(sM0))

    RA = 1024 // RBA
    CPR_A = RBA // 16
    SPLIT = bool(cfg.get('split')) and 'nosplit' not in X
    NDW = 4 if SPLIT else NW
    NA = BM // RA // NDW
    assert NA * RA * NDW == BM
    lda_set = sorted(set(j['lda'] for j in jobs))
    vAoff = {}
    sh, mk = swz_a(RBA)
    for lda in lda_set:
        r = V.get()
        vAoff[lda] = r
        E.I('v_lshrrev_b32', v(vT0), CPR_A.bit_length() - 1, v(vLane))
        E.I('s_mul_i32', s(sTmp), s(sW), RA)
        E.I('v_add_u32', v(vT0), s(sTmp), v(vT0))
        E.I('v_lshrrev_b32', v(vT1), sh, v(vT0))
        E.I('v_and_b32', v(vT1), mk, v(vT1))
        E.I('v_and_b32', v(vT2), CPR_A - 1, v(vLane))
        E.I('v_xor_b32', v(vT1), v(vT1), v(vT2))
        if lda < 0:
            assert BK * 64 == NW * 1024
            E.I('v_lshlrev_b32', v(vT2), 4, v(vLane))
            E.I('s_lshr_b32', s(sTmp), s(sM0), 5)
            E.I('s_mul_i32', s(sTmp), s(sTmp), -lda)
            E.I('s_add_u32', s(sTmp), s(sTmp), s(sWG))
            E.I('v_add_u32', v(r), s(sTmp), v(vT2))
            continue
        E.I('v_lshlrev_b32', v(vT1), 4, v(vT1))
        E.I('v_add_u32', v(vT0), s(sM0), v(vT0))
        E.I('s_mov_b32', s(sTmp), lda)
        E.I('v_mul_lo_u32', v(vT0), v(vT0), s(sTmp))
        E.I('v_add_u32', v(r), v(vT0), v(vT1))
    vWoff = {}
    NWD = []
    for ri, rw in enumerate(regions):
        RBW = rw * 2
        RW_ = 1024 // RBW
        CPR_W = RBW // 16
        n = BK // RW_ // NDW
        assert n * RW_ * NDW == BK
        NWD.append(n)
        for ldw in sorted(set(j['ldw'] for j in jobs)):
            r = V.get()
            vWoff[(ri, ldw)] = r
            E.I('v_lshrrev_b32', v(vT0), CPR_W.bit_length() - 1, v(vLane))
            if RBW == 256:
                E.I('v_and_b32', v(vT1), 3, v(vT0))
            else:
                E.I('v_bfe_u32', v(vT1), v(vT0), 1, 1)
            E.I('v_lshlrev_b32', v(vT1), 2, v(vT1))
            E.I('v_and_b32', v(vT2), CPR_W - 1, v(vLane))
            E.I('v_xor_b32', v(vT1), v(vT1), v(vT2))
            E.I('v_lshlrev_b32', v(vT1), 4, v(vT1))
            E.I('s_mul_i32', s(sTmp), s(sW), RW_)
            E.I('v_add_u32', v(vT0), s(sTmp), v(vT0))
            E.I('s_mov_b32', s(sTmp), ldw)
            E.I('v_mul_lo_u32', v(vT0), v(vT0), s(sTmp))
            E.I('v_add_u32', v(vT0), v(vT0), v(vT1))
            E.I('s_lshl_b32', s(sTmp), s(sN0), 1)
            E.I('v_add_u32', v(r), s(sTmp), v(vT0))
            if 'linw' in X:
                E.I('v_lshlrev_b32', v(r), 4, v(vLane))
                E.I('s_mul_i32', s(sTmp), s(sN0), jobs[0]['K'] * 2)
                E.I('s_add_u32', s(sTmp), s(sTmp), s(sWG))
                E.I('v_add_u32', v(r), s(sTmp), v(r))

    stages = []
    for ji, j in enumerate(jobs):
        for k0 in range(0, j['K'], BK):
            stages.append((ji, k0))
    vm = dict(n=0)
    last_dma = {}

    dmaq = []

    GR = dict(grp=0)

    def issue_dma(st, now=False):
        if 'nodma' in X or GR['grp'] == 1:
            last_dma[st] = vm['n']
            return
        ji, k0 = stages[st]
        j = jobs[ji]
        base = (st % NST) * STAGE_BYTES
        groups = []
        for t in range(NA):
            if j['lda'] < 0:
                go_ = k0 * 64 + t * (-j['lda'])
            else:
                go_ = k0 * 2 + t * NDW * RA * j['lda']
            groups.append((base + t * NDW * 1024, go_, vAoff[j['lda']], j['sA'], EMBED and t >= NA // 2))
        for ri, rw in enumerate(regions):
            RW_ = 1024 // (rw * 2)
            for t in range(NWD[ri]):
                groups.append((base + reg_off[ri] + t * NDW * 1024, (k0 + t * NDW * RW_) * ((rw * 2) if 'linw' in X else j['ldw']),
                               vWoff[(ri, j['ldw'])], j['sW'][ri]))
        for n, g in enumerate(groups):
            def go(g=g, lastone=(n == len(groups) - 1)):
                E.I('s_add_u32', 'm0', s(sWG), g[0])
                if len(g) > 4 and g[4]:
                    E.I('s_add_u32', s(sT), s(sDel), g[1])
                else:
                    E.I('s_mov_b32', s(sT), g[1])
                E.I('buffer_load_dwordx4', v(g[2]), s(g[3], 4), s(sT), mods='offen lds')
                vm['n'] += 1
                if lastone:
                    last_dma[st] = vm['n']
            if now:
                go()
            else:
                dmaq.append(go)

    srd.finish()
    if not SPLIT:
        for st in range(min(NST, len(stages))):
            issue_dma(st, now=True)

    if 'LNX' in jobs[0]:
        ln_side_job(E, V, jobs[0], sW, sTmp, vLane, vm)
    PERMW = any(j.get('ln') for j in jobs)
    sWp = 92
    E.I('s_mul_i32', s(sWp), s(sWm), max(1, STEPS // WM))
    vXa = [[V.get() for _ in range(TM)] for _ in range(STEPS)]
    E.I('s_lshl_b32', s(sTmp), s(sWm), 6)
    E.I('v_add_u32', v(vT0), s(sTmp), v(vL31))
    E.I('v_lshrrev_b32', v(vT1), sh, v(vT0))
    E.I('v_and_b32', v(vT1), mk, v(vT1))
    E.I('v_mul_u32_u24', v(vT0), RBA, v(vT0))
    LINA = lda_set[0] < 0
    for ks in range(STEPS):
        if LINA:
            assert not PERMW
            E.I('s_mul_i32', s(sTmp), s(sWk), STEPS * 1024)
            E.I('s_mul_i32', s(sTmp + 1), s(sWm), TM * BK * 64)
            E.I('s_add_u32', s(sTmp), s(sTmp), s(sTmp + 1))
            E.I('v_lshlrev_b32', v(vT3), 4, v(vLane))
            for sl in range(TM):
                E.I('s_add_u32', s(sTmp + 1), s(sTmp), ks * 1024 + sl * BK * 64)
                E.I('v_add_u32', v(vXa[ks][sl]), s(sTmp + 1), v(vT3))
            continue
        if PERMW:
            E.I('s_xor_b32', s(sTmp + 1), s(sWp), ks)
        else:
            E.I('s_mov_b32', s(sTmp + 1), ks)
        E.I('s_mul_i32', s(sTmp), s(sWk), STEPS)
        E.I('s_add_u32', s(sTmp), s(sTmp), s(sTmp + 1))
        E.I('s_lshl_b32', s(sTmp), s(sTmp), 1)
        E.I('v_add_u32', v(vT3), s(sTmp), v(vHH))
        E.I('v_xor_b32', v(vT3), v(vT3), v(vT1))
        E.I('v_lshl_add_u32', v(vT3), v(vT3), 4, v(vT0))
        for sl in range(TM):
            if PERMW:
                E.I('s_xor_b32', s(sTmp), s(sWn), sl)
            else:
                E.I('s_mov_b32', s(sTmp), sl)
            E.I('s_mul_i32', s(sTmp), s(sTmp), 32 * RBA)
            E.I('v_add_u32', v(vXa[ks][sl]), s(sTmp), v(vT3))
    perms = sorted(set(bool(j.get('perm')) for j in jobs))
    vWa = {}
    fr = cfg['frag']
    for pm in perms:
        for jn in range(TN):
            ri, cm, cc = fr(jn)
            RBW = regions[ri] * 2
            E.I('v_bfe_u32', v(vT0), v(vLane), 2, 2)
            E.I('v_lshrrev_b32', v(vT1), 5, v(vLane))
            E.I('v_lshlrev_b32', v(vT1), 2 if pm else 3, v(vT1))
            E.I('v_add_u32', v(vT1), v(vT1), v(vT0))
            E.I('s_mul_i32', s(sTmp), s(sWk), 16 * STEPS)
            E.I('v_add_u32', v(vT1), s(sTmp), v(vT1))
            E.I('v_mul_u32_u24', v(vT1), RBW, v(vT1))
            E.I('v_bfe_u32', v(vT2), v(vLane), 4, 1)
            E.I('v_lshlrev_b32', v(vT2), 4, v(vT2))
            E.I('v_and_b32', v(vT3), 3, v(vLane))
            E.I('v_lshl_add_u32', v(vT2), v(vT3), 2, v(vT2))
            E.I('s_mul_i32', s(sTmp), s(sWn), cm)
            E.I('s_add_u32', s(sTmp), s(sTmp), cc)
            E.I('v_add_u32', v(vT2), s(sTmp), v(vT2))
            E.I('v_lshlrev_b32', v(vT2), 1, v(vT2))
            if RBW == 256:
                E.I('v_lshlrev_b32', v(vT3), 6, v(vT0))
            else:
                E.I('v_bfe_u32', v(vT3), v(vT0), 1, 1)
                E.I('v_lshlrev_b32', v(vT3), 6, v(vT3))
            E.I('v_xor_b32', v(vT2), v(vT2), v(vT3))
            E.I('v_add_u32', v(vT1), v(vT1), v(vT2))
            for ks in range(STEPS):
                r = V.get()
                vWa[(pm, jn, ks)] = r
                if PERMW:
                    E.I('s_xor_b32', s(sTmp), s(sWp), ks)
                else:
                    E.I('s_mov_b32', s(sTmp), ks)
                E.I('s_mul_i32', s(sTmp), s(sTmp), 16 * RBW)
                E.I('s_add_u32', s(sTmp), s(sTmp), reg_off[ri])
                E.I('v_add_u32', v(r), s(sTmp), v(vT1))

    vStamp = V.get()
    nst = [0]

    def stamp():
        if 'stamp' not in X:
            return
        E.I('s_memtime', 's[100:101]')
        E.wait(lgkm=0)
        E.I('v_writelane_b32', v(vStamp), 's100', nst[0])
        nst[0] += 1
    stamp()
    acc = V.get(16 * TM * TN, 4)
    fX = [[V.get(4, 4) for _ in range(TM)] for _ in range(2)]
    fW = [[V.get(4, 4) for _ in range(TN)] for _ in range(2)]
    fS = V.get(8, 4)
    anyln = any(j.get('ln') for j in jobs)
    if anyln:
        vS1 = [V.get() for _ in range(TM)]
        vS2 = [V.get() for _ in range(TM)]
        vCS = [V.get() for _ in range(TN)]
        vOnes = V.get()
        _b = V.get(8, 2)
        vX1 = [_b, _b + 2, _b + 1, _b + 3]
        vX2 = [_b + 4, _b + 6, _b + 5, _b + 7]
        vXC = [[V.get() for _ in range(4)] for _ in range(TN)]
        E.I('v_mov_b32', v(vOnes), '0x3f803f80')
    cfg['V'] = V

    def A(i, jn):
        return acc + (i * TN + jn) * 16

    addr_regs = [r for x in vXa for r in x] + list(vWa.values())
    cur_slot = [0]

    def set_slot(slot, queue=None):
        d = (slot - cur_slot[0]) * STAGE_BYTES
        if d:
            for r in addr_regs:
                ins = ('v_add_u32', v(r), d, v(r)) if d > 0 else ('v_subrev_u32', v(r), -d, v(r))
                if queue is None:
                    E.I(*ins)
                else:
                    queue.append(ins)
        cur_slot[0] = slot

    def read_frags(j, ks, setid):
        if 'noread' in X:
            return
        pm = bool(j.get('perm'))
        for i in range(TM):
            E.I('ds_read_b128', v(fX[setid][i], 4), v(vXa[ks][i]))
        for jn in range(TN):
            RBW = regions[fr(jn)[0]] * 2
            for hf in range(2):
                koff = 8 * hf if pm else 4 * hf
                E.I('ds_read_b64_tr_b16', v(fW[setid][jn] + 2 * hf, 2), v(vWa[(pm, jn, ks)]), mods=f'offset:{koff * RBW}')

    if jobs[0].get('extstats'):
        vXS = V.get(16, 4)
        jobs[0]['vXS'] = vXS
        E.I('s_lshl_b32', s(sTmp), s(sWm), 6)
        E.I('s_add_u32', s(sTmp), s(sTmp), s(sM0))
        E.I('v_add_u32', v(vT0), s(sTmp), v(vL31))
        E.I('v_lshlrev_b32', v(vT0), 6, v(vT0))
        E.I('v_lshl_add_u32', v(vT0), v(vHH), 5, v(vT0))
        slot_addr(dict(E=E, sTmp=sTmp, PERMW=PERMW, sWn=sWn), vT0, vT1, 2048)
        for i in range(2):
            for q in range(2):
                E.I('buffer_load_dwordx4', v(vXS + 8 * i + 4 * q, 4), v((vT0, vT1)[i]), s(jobs[0]['sST'], 4), 0,
                    mods=f'offen offset:{16 * q}')
                vm['n'] += 1
    Lg1, Lfin = name + '_g1', name + '_fin'
    if SPLIT:
        E.I('s_cmp_ge_u32', s(sW), 4)
        E.branch('s_cbranch_scc1', Lg1)
    nst0 = nst[0]
    for grp in range(2 if SPLIT else 1):
        GR['grp'] = grp
        if SPLIT:
            vm['n'] = 0
            last_dma.clear()
        cur_slot[0] = 0
        nst[0] = nst0
        if grp == 1:
            E.label(Lg1)
        if SPLIT:
            for st in range(min(NST, len(stages))):
                issue_dma(st, now=True)

        def stage_sync(st):
            while dmaq:
                dmaq.pop(0)()
            if 'nowait' in X:
                E.wait(vm=int(os.environ.get('VMW', '24')))
            else:
                E.wait(vm=(None if grp == 1 else min(63, vm['n'] - last_dma[st])), lgkm=0)
                E.barrier()
            if st >= 1 and st + NST - 1 < len(stages):
                issue_dma(st + NST - 1)
            set_slot(st % NST)

        pending = []
        if cfg.get('prefetch') and 'nopf' not in X and (grp == 1 or not SPLIT):
            vPf = V.get()
            sPfW = 95
            E.I('v_lshlrev_b32', v(vPf), 4, v(vLane))
            if SPLIT:
                E.I('s_lshl_b32', s(sPfW), 's2', 2)
                E.I('s_add_u32', s(sPfW), s(sPfW), s(sW))
                E.I('s_sub_u32', s(sPfW), s(sPfW), 4)
            else:
                E.I('s_lshl_b32', s(sPfW), 's2', 3)
                E.I('s_add_u32', s(sPfW), s(sPfW), s(sW))
            for _ in range(0 if SPLIT else 12):
                pending.append(lambda: None)
            for sr, per in [(x, y * (2 if SPLIT else 1)) for x, y in cfg['prefetch'](jobs)]:
                for i in range(per):
                    def go(sr=sr, per=per, i=i):
                        E.I('s_mov_b32', 'm0', SCR)
                        E.I('s_mul_i32', s(sT), s(sPfW), per * 1024)
                        E.I('s_add_u32', s(sT), s(sT), i * 1024)
                        E.I('buffer_load_dwordx4', v(vPf), s(sr, 4), s(sT), mods='offen lds')
                        vm['n'] += 1
                    pending.append(go)
                    for _ in range(5):
                        pending.append(lambda: None)
        stage_sync(0)
        setid = 0
        read_frags(jobs[stages[0][0]], 0, setid)
        for st, (ji, k0) in enumerate(stages):
            j = jobs[ji]
            first = (k0 == 0)
            lastk = (k0 + BK >= j['K'])
            stamp()
            if first and j.get('ln'):
                for r in vX1 + vX2 + vXC[0] + vXC[1]:
                    E.I('v_mov_b32', v(r), 0)
            for ks in range(STEPS):
                cur = setid
                setid ^= 1
                if ks + 1 < STEPS:
                    read_frags(j, ks + 1, setid)
                    E.wait(lgkm=TM + 2 * TN)
                elif st + 1 < len(stages):
                    stage_sync(st + 1)
                    read_frags(jobs[stages[st + 1][0]], 0, setid)
                else:
                    E.wait(lgkm=0)
                lnq = []
                if j.get('ln') and 'noln' not in X:
                    for q in range(0 if j.get('extstats') else 4):
                        x = fX[cur][0] + q
                        lnq.append(('v_lshlrev_b32', v(vT0), 16, v(x)))
                        lnq.append(('v_and_b32', v(vT1), '0xffff0000', v(x)))
                        if 'pk' in X:
                            lnq.append(('v_pk_add_f32', v(vX1[q & 1], 2), v(vX1[q & 1], 2), v(vT0, 2)))
                            lnq.append(('v_pk_fma_f32', v(vX2[q & 1], 2), v(vT0, 2), v(vT0, 2), v(vX2[q & 1], 2)))
                            continue
                        lnq.append(('v_add_f32', v(vX1[q & 1]), v(vX1[q & 1]), v(vT0)))
                        lnq.append(('v_add_f32', v(vX1[2 + (q & 1)]), v(vX1[2 + (q & 1)]), v(vT1)))
                        lnq.append(('v_fma_f32', v(vX2[q & 1]), v(vT0), v(vT0), v(vX2[q & 1])))
                        lnq.append(('v_fma_f32', v(vX2[2 + (q & 1)]), v(vT1), v(vT1), v(vX2[2 + (q & 1)])))
                    if ks < STEPS // WM:
                        for q in range(4):
                            for jj in range(TN):
                                x = fW[cur][jj] + q
                                lnq.append(('v_lshlrev_b32', v(vT2), 16, v(x)))
                                lnq.append(('v_and_b32', v(vT3), '0xffff0000', v(x)))
                                lnq.append(('v_add_f32', v(vXC[jj][q & 1]), v(vXC[jj][q & 1]), v(vT2)))
                                lnq.append(('v_add_f32', v(vXC[jj][2 + (q & 1)]), v(vXC[jj][2 + (q & 1)]), v(vT3)))
                if STEPS >= 2 and ks == STEPS - 2 and st + 1 < len(stages):
                    set_slot((st + 1) % NST, lnq)
                per = (len(lnq) + TM * TN - 1) // (TM * TN)
                for i in range(TM):
                    for jn in range(TN):
                        c = 0 if (first and ks == 0) else v(A(i, jn), 16)
                        if 'nomfma' in X and not (first and ks == 0):
                            pass
                        elif (j['swap'][jn] if isinstance(j['swap'], (list, tuple)) else j['swap']):
                            E.I('v_mfma_f32_32x32x16_bf16', v(A(i, jn), 16), v(fW[cur][jn], 4), v(fX[cur][i], 4), c)
                        else:
                            E.I('v_mfma_f32_32x32x16_bf16', v(A(i, jn), 16), v(fX[cur][i], 4), v(fW[cur][jn], 4), c)
                        for _ in range(2 if TM * TN * STEPS <= 4 else 1):
                            if dmaq:
                                dmaq.pop(0)()
                            elif pending:
                                pending.pop(0)()
                        for _ in range(per):
                            if lnq:
                                E.I(*lnq.pop(0))
            if lastk:
                env = dict(E=E, V=V, j=j, A=A, vL31=vL31, vHH=vHH, vLane=vLane, sWm=sWm, sWn=sWn, sWk=sWk, sW=sW,
                           sM0=sM0w, sN0=sN0, sTmp=sTmp, sT=sT, vT=[vT0, vT1, vT2, vT3], fS=fS, vm=vm,
                           SCR=SCR, NW=NW, TM=TM, TN=TN, WM=WM, PERMW=PERMW, pending=pending, defer=(st + 1 < len(stages) and 'nodefer' not in X))
                if j.get('ln'):
                    env.update(vS1=vS1, vS2=vS2, vCS=vCS)
                    for dst, src in ((vS1[0], vX1), (vS2[0], vX2), (vCS[0], vXC[0]), (vCS[1], vXC[1])):
                        E.I('v_add_f32', v(src[0]), v(src[0]), v(src[1]))
                        E.I('v_add_f32', v(src[2]), v(src[2]), v(src[3]))
                        E.I('v_add_f32', v(dst), v(src[0]), v(src[2]))
                stamp()
                j['epi'](env)
                stamp()
        if SPLIT and grp == 0:
            E.branch('s_branch', Lfin)
    if SPLIT:
        E.label(Lfin)
    if 'stamp' in X:
        E.wait(vm=0)
        stamp()
        E.I('s_load_dwordx2', 's[96:97]', 's[0:1]', ARG['ws'])
        E.wait(lgkm=0)
        E.I('s_add_u32', 's96', 's96', (128 + (6 if EMBED else int(name[1]))) << 20)
        E.I('s_addc_u32', 's97', 's97', 0)
        E.I('s_and_b32', 's97', 's97', '0xffff')
        E.I('s_mov_b32', 's98', 1 << 20)
        E.I('s_mov_b32', 's99', '0x00020000')
        E.I('v_lshlrev_b32', v(vT0), 2, 'v0')
        E.I('s_lshl_b32', s(sTmp), 's2', 11)
        E.I('v_add_u32', v(vT0), s(sTmp), v(vT0))
        E.I('buffer_store_dword', v(vStamp), v(vT0), 's[96:99]', 0, mods='offen')

    if EMBED:
        return lds_total, V.n
    E.label(Lend)
    E.I('s_endpgm')
    kernel_footer(E, name, V.n)
    return lds_total


def wave_sum(E, r, sdst):
    for m in ('row_shr:1', 'row_shr:2', 'row_shr:4', 'row_shr:8'):
        E.I('v_add_f32_dpp', v(r), v(r), v(r), mods=f'{m} row_mask:0xf bank_mask:0xf bound_ctrl:0')
    E.I('v_add_f32_dpp', v(r), v(r), v(r), mods='row_bcast:15 row_mask:0xa bank_mask:0xf')
    E.I('v_add_f32_dpp', v(r), v(r), v(r), mods='row_bcast:31 row_mask:0xc bank_mask:0xf')
    E.I('v_readlane_b32', s(sdst), v(r), 63)


def ln_side_job(E, V, j, sW, sTmp, vLane, vm):
    x = V.get(4, 4)
    f = V.get(8)
    a, t = V.get(), V.get()
    E.I('s_lshl_b32', s(sTmp), 's2', 3)
    E.I('s_add_u32', s(sTmp), s(sTmp), s(sW))
    E.I('s_lshl_b32', s(sTmp), s(sTmp), 10)
    E.I('v_lshlrev_b32', v(a), 4, v(vLane))
    E.I('v_add_u32', v(a), s(sTmp), v(a))
    E.I('buffer_load_dwordx4', v(x, 4), v(a), s(j['sLX'], 4), 0, mods='offen')
    vm['n'] += 1
    E.wait(vm=0)
    for d in range(4):
        E.I('v_lshlrev_b32', v(f + 2 * d), 16, v(x + d))
        E.I('v_and_b32', v(f + 2 * d + 1), '0xffff0000', v(x + d))
    E.I('v_add_f32', v(t), v(f), v(f + 1))
    for r in range(2, 8):
        E.I('v_add_f32', v(t), v(t), v(f + r))
    wave_sum(E, t, sTmp)
    E.I('v_mov_b32', v(t), '0xbb000000')
    E.I('v_mul_f32', v(t), s(sTmp), v(t))
    for r in range(8):
        E.I('v_add_f32', v(f + r), v(f + r), v(t))
    E.I('v_mul_f32', v(t), v(f), v(f))
    for r in range(1, 8):
        E.I('v_fma_f32', v(t), v(f + r), v(f + r), v(t))
    wave_sum(E, t, sTmp)
    E.I('v_mov_b32', v(t), '0x3b000000')
    E.I('v_mul_f32', v(t), s(sTmp), v(t))
    E.I('v_add_f32', v(t), '0x3727c5ac', v(t))
    E.I('v_rsq_f32', v(t), v(t))
    E.I('v_mul_f32', v(t), '0x3e0293ee', v(t))
    for r in range(8):
        E.I('v_mul_f32', v(f + r), v(f + r), v(t))
    for d in range(4):
        E.I('v_cvt_pk_bf16_f32', v(x + d), v(f + 2 * d), v(f + 2 * d + 1))
    E.I('buffer_store_dwordx4', v(x, 4), v(a), s(j['sLO'], 4), 0, mods='offen')
    vm['n'] += 1


def half_sum(E, r, tmp):
    E.I('v_mov_b32', v(tmp), v(r))
    E.I('v_permlane32_swap_b32', v(r), v(tmp))
    E.I('v_add_f32', v(r), v(r), v(tmp))


def ln_prepare(env):
    E, V = env['E'], env['V']
    vS1, vS2, vCS = env['vS1'], env['vS2'], env['vCS']
    t0, t1, t2 = env['vT'][0], env['vT'][1], env['vT'][2]
    sT = env['sTmp']
    SCR = env['SCR']
    half_sum(E, vS1[0], t0)
    half_sum(E, vS2[0], t0)
    for jn in range(env['TN']):
        half_sum(E, vCS[jn], t0)
    E.I('s_lshl_b32', s(sT), s(env['sW']), 9)
    E.I('s_add_u32', s(sT), s(sT), SCR)
    E.I('v_lshlrev_b32', v(t1), 2, v(env['vL31']))
    E.I('v_add_u32', v(t2), s(sT), v(t1))
    E.I('ds_write_b32', v(t2), v(vS1[0]))
    E.I('ds_write_b32', v(t2), v(vS2[0]), mods='offset:128')
    for jn in range(env['TN']):
        E.I('ds_write_b32', v(t2), v(vCS[jn]), mods=f'offset:{256 + 128 * jn}')
    E.wait(lgkm=0)
    E.barrier()
    E.I('s_lshl_b32', s(sT), s(env['sWm']), 10)
    E.I('s_add_u32', s(sT), s(sT), SCR)
    E.I('v_add_u32', v(t2), s(sT), v(t1))
    t3 = env['vT'][3]
    slot_addr(env, t2, t3, 512)
    for i in range(env['TM']):
        if env['j'].get('extstats'):
            xs = env['j']['vXS'] + 8 * i
            for c in range(2):
                dst = (vS1, vS2)[c][i]
                E.I('v_add_f32', v(xs + c), v(xs + c), v(xs + 2 + c))
                E.I('v_add_f32', v(xs + 4 + c), v(xs + 4 + c), v(xs + 6 + c))
                E.I('v_add_f32', v(dst), v(xs + c), v(xs + 4 + c))
                half_sum(E, dst, t0)
            continue
        E.I('ds_read_b32', v(vS1[i]), v((t2, t3)[i]))
        E.I('ds_read_b32', v(vS2[i]), v((t2, t3)[i]), mods='offset:128')
    if 'vCSx' not in env['j']:
        env['j']['vCSx'] = V.get(32, 4)
    if 'pk' not in env['vm']:
        env['vm']['pk'] = V.get(32, 4)
        env['vm']['pa'] = V.get(4)
    cs = env['j']['vCSx']
    cs2 = env['vm']['pk']
    E.I('s_lshl_b32', s(sT), s(env['sWn']), 9)
    E.I('s_add_u32', s(sT), s(sT), SCR + 256)
    E.I('v_lshlrev_b32', v(t1), 2, v(env['vLane']))
    E.I('v_add_u32', v(t2), s(sT), v(t1))
    for wm in range(env['WM']):
        E.I('ds_read_b32', v(cs2 + wm), v(t2), mods=f'offset:{1024 * wm}')
    E.wait(lgkm=0)
    for wm in range(1, env['WM']):
        E.I('v_add_f32', v(cs2), v(cs2), v(cs2 + wm))
    E.I('s_lshl_b32', s(sT), s(env['sW']), 8)
    E.I('s_add_u32', s(sT), s(sT), SCR + env['NW'] * 512)
    E.I('v_add_u32', v(t2), s(sT), v(t1))
    E.I('ds_write_b32', v(t2), v(cs2))
    E.I('v_lshlrev_b32', v(t1), 4, v(env['vHH']))
    E.I('v_add_u32', v(t1), s(sT), v(t1))
    E.wait(lgkm=0)
    for jn in range(env['TN']):
        for q in range(4):
            E.I('ds_read_b128', v(cs + 16 * jn + 4 * q, 4), v(t1), mods=f'offset:{128 * jn + 32 * q}')
    E.wait(lgkm=0)
    for i in range(env['TM']):
        E.I('v_mul_f32', v(vS1[i]), '0x3b000000', v(vS1[i]))
        E.I('v_mul_f32', v(vS2[i]), '0x3b000000', v(vS2[i]))
        E.I('v_fma_f32', v(vS2[i]), f'-{v(vS1[i])}', v(vS1[i]), v(vS2[i]))
        E.I('v_max_f32', v(vS2[i]), 0, v(vS2[i]))
        E.I('v_add_f32', v(vS2[i]), '0x3727c5ac', v(vS2[i]))
        E.I('v_rsq_f32', v(vS2[i]), v(vS2[i]))
        E.I('v_mul_f32', v(vS1[i]), v(vS1[i]), v(vS2[i]))
        E.I('v_sub_f32', v(vS1[i]), 0, v(vS1[i]))
    return vS2, vS1, cs


def ln_apply(env, vR, vMR, cs):
    E, A = env['E'], env['A']
    for i in range(env['TM']):
        for jn in range(env['TN']):
            for r in range(16):
                E.I('v_mul_f32', v(A(i, jn) + r), v(A(i, jn) + r), v(vR[i]))
                E.I('v_fma_f32', v(A(i, jn) + r), v(vMR[i]), v(cs + 16 * jn + r), v(A(i, jn) + r))


def pack_store(env, base_reg, vaddr, soff, off, srd, slot=None):
    E, V = env['E'], env['V']
    if env['defer']:
        if 'pk' not in env['vm']:
            env['vm']['pk'] = V.get(32, 4)
            env['vm']['pa'] = V.get(4)
        n = env.setdefault('npk', 0)
        f = env['vm']['pk'] + 8 * n
        env['npk'] = n + 1
        pa = env['vm']['pa'] + (slot if slot is not None else (0 if vaddr == env['vT'][0] else 1))
        E.I('v_mov_b32', v(pa), v(vaddr))
        vaddr = pa
    else:
        f = env['fS']
    for u in range(2):
        for d in range(4):
            E.I('v_cvt_pk_bf16_f32', v(f + 4 * u + d), v(base_reg + 8 * u + 2 * d), v(base_reg + 8 * u + 2 * d + 1))
    for u in range(2):
        if 'nostore' in X:
            continue

        def st(u=u, f=f, vaddr=vaddr):
            E.I('buffer_store_dwordx4', v(f + 4 * u, 4), v(vaddr), s(srd, 4), soff, mods=f'offen offset:{off + 1024 * u} {STF}')
            env['vm']['n'] += 1
        if env['defer']:
            env['pending'].append(st)
        else:
            st()


def lane_part(env, t0):
    E = env['E']
    E.I('v_lshlrev_b32', v(t0), 4, v(env['vLane']))


def slot_addr(env, t0, t1, delta):
    E = env['E']
    sT = env['sTmp']
    if env['PERMW']:
        E.I('s_mul_i32', s(sT), s(env['sWn']), delta)
        E.I('s_sub_u32', s(sT + 1), delta, s(sT))
        E.I('v_add_u32', v(t1), s(sT + 1), v(t0))
        E.I('v_add_u32', v(t0), s(sT), v(t0))
    else:
        E.I('v_add_u32', v(t1), delta, v(t0))


def epi_qk(env):
    E, j, A = env['E'], env['j'], env['A']
    if j.get('ln'):
        vR, vMR, cs = ln_prepare(env)
        for i in range(2):
            E.I('v_mul_f32', v(vR[i]), '0x3e0293ee', v(vR[i]))
            E.I('v_mul_f32', v(vMR[i]), '0x3e0293ee', v(vMR[i]))
        ln_apply(env, vR, vMR, cs)
    t0, t1 = env['vT'][0], env['vT'][1]
    sT = env['sTmp']
    lane_part(env, t0)
    E.I('s_lshl_b32', s(sT), s(env['sWm']), 6)
    E.I('s_add_u32', s(sT), s(sT), s(env['sM0']))
    E.I('s_lshl_b32', s(sT), s(sT), 8)
    E.I('s_lshl_b32', s(sT + 1), s(env['sN0']), 12)
    E.I('s_add_u32', s(sT), s(sT), s(sT + 1))
    E.I('s_lshl_b32', s(sT + 1), s(env['sWn']), 12)
    E.I('s_add_u32', s(sT), s(sT), s(sT + 1))
    E.I('v_add_u32', v(t0), s(sT), v(t0))
    slot_addr(env, t0, t1, 8192)
    for i in range(2):
        for jn in range(2):
            pack_store(env, A(i, jn), (t0, t1)[i], 0, 2048 * jn, j['sO'])


def epi_v(env):
    E, j, A = env['E'], env['j'], env['A']
    t0, t1 = env['vT'][0], env['vT'][1]
    sT = env['sTmp']
    lane_part(env, t0)
    E.I('s_lshl_b32', s(sT), s(env['sN0']), 12)
    E.I('s_lshl_b32', s(sT + 1), s(env['sWm']), 6)
    E.I('s_add_u32', s(sT + 1), s(sT + 1), s(env['sM0']))
    E.I('s_lshl_b32', s(sT + 1), s(sT + 1), 6)
    E.I('s_add_u32', s(sT), s(sT), s(sT + 1))
    E.I('s_lshl_b32', s(sT + 1), s(env['sWn']), 18)
    E.I('s_add_u32', s(sT), s(sT), s(sT + 1))
    E.I('v_add_u32', v(t0), s(sT), v(t0))
    t2 = env['vT'][2]
    slot_addr(env, t0, t2, 2048)
    for jn in range(2):
        if jn:
            E.I('v_add_u32', v(t0), 131072, v(t0))
            E.I('v_add_u32', v(t2), 131072, v(t2))
        for i in range(2):
            pack_store(env, A(i, jn), (t0, t2)[i], 0, 0, j['sO'], slot=2 * jn + i)


def epi_kv(env):
    A = env['A']
    e1 = dict(env)
    e1['A'] = lambda i, jn: A(i, jn)
    epi_qk(e1)
    e2 = dict(env)
    e2['A'] = lambda i, jn: A(i, jn + 2)
    e2['j'] = dict(env['j'], sO=env['j']['sO2'])
    epi_v(e2)


def epi_glu(env):
    E, j, A = env['E'], env['j'], env['A']
    vR, vMR, cs = ln_prepare(env)
    t0, t1 = env['vT'][0], env['vT'][1]
    sT = env['sTmp']
    sc = env['fS']
    for i in range(2):
        E.I('v_mul_f32', v(sc + 2 * i), '0xbfb8aa3b', v(vR[i]))
        E.I('v_mul_f32', v(sc + 2 * i + 1), '0xbfb8aa3b', v(vMR[i]))
    for i in range(2):
        for r in range(16):
            g, u = A(i, 0) + r, A(i, 1) + r
            E.I('v_mul_f32', v(g), v(g), v(sc + 2 * i))
            E.I('v_mul_f32', v(u), v(u), v(vR[i]))
            E.I('v_fma_f32', v(g), v(sc + 2 * i + 1), v(cs + r), v(g))
            E.I('v_fma_f32', v(u), v(vMR[i]), v(cs + 16 + r), v(u))
            E.I('v_exp_f32', v(g), v(g))
        for r in range(16):
            g = A(i, 0) + r
            E.I('v_add_f32', v(g), 1.0, v(g))
            E.I('v_rcp_f32', v(g), v(g))
        for r in range(16):
            g, u = A(i, 0) + r, A(i, 1) + r
            E.I('v_mul_f32', v(g), v(g), v(u))
    lane_part(env, t0)
    E.I('s_lshl_b32', s(sT), s(env['sWm']), 6)
    E.I('s_add_u32', s(sT), s(sT), s(env['sM0']))
    E.I('s_mul_i32', s(sT), s(sT), 3584)
    E.I('s_lshl_b32', s(sT + 1), s(env['sWn']), 5)
    E.I('s_add_u32', s(sT + 1), s(sT + 1), s(env['sN0']))
    E.I('s_lshl_b32', s(sT + 1), s(sT + 1), 6)
    E.I('s_add_u32', s(sT), s(sT), s(sT + 1))
    E.I('v_add_u32', v(t0), s(sT), v(t0))
    slot_addr(env, t0, t1, 32 * 3584)
    for i in range(2):
        pack_store(env, A(i, 0), (t0, t1)[i], 0, 0, j['sO'])


def epi_red(env):
    E, j, A, V = env['E'], env['j'], env['A'], env['V']
    t0, t1, t2 = env['vT'][0], env['vT'][1], env['vT'][2]
    sT = env['sTmp']
    acc = A(0, 0)
    sWk, sWm, sWn = env['sWk'], env['sWm'], env['sWn']
    res = V.get(4, 2)
    rcv = V.get(8, 4)
    E.I('s_lshl_b32', s(sT), s(sWm), 5)
    E.I('s_add_u32', s(sT), s(sT), s(env['sM0']))
    E.I('v_add_u32', v(t2), s(sT), v(env['vL31']))
    E.I('v_lshlrev_b32', v(t2), 10, v(t2))
    E.I('v_lshl_add_u32', v(t2), v(env['vHH']), 3, v(t2))
    E.I('s_lshl_b32', s(sT), s(sWn), 5)
    E.I('s_add_u32', s(sT), s(sT), s(env['sN0']))
    E.I('s_lshl_b32', s(sT), s(sT), 1)
    E.I('s_lshl_b32', s(sT + 1), s(sWk), 5)
    E.I('s_add_u32', s(sT), s(sT), s(sT + 1))
    E.I('v_add_u32', v(t2), s(sT), v(t2))
    for q in range(2):
        E.I('buffer_load_dwordx2', v(res + 2 * q, 2), v(t2), s(j['sR'], 4), 0, mods=f'offen offset:{16 * q}')
    E.I('v_lshlrev_b32', v(t0), 4, v(env['vLane']))
    E.I('s_lshl_b32', s(sT), s(env['sW']), 11)
    E.I('s_add_u32', s(sT), s(sT), env['SCR'])
    E.I('v_add_u32', v(t1), s(sT), v(t0))
    E.I('s_xor_b32', s(sT + 1), s(env['sW']), 4)
    E.I('s_lshl_b32', s(sT + 1), s(sT + 1), 11)
    E.I('s_add_u32', s(sT + 1), s(sT + 1), env['SCR'])
    E.I('v_add_u32', v(t0), s(sT + 1), v(t0))
    L1, L2 = E.newlabel('red'), E.newlabel('red')
    E.I('s_cmp_eq_u32', s(sWk), 1)
    E.branch('s_cbranch_scc1', L1)
    for wk in range(2):
        if wk:
            E.label(L1)
        for q in range(2):
            E.I('ds_write_b128', v(t1), v(acc + 8 * (1 - wk) + 4 * q, 4), mods=f'offset:{1024 * q}')
        if wk:
            for r in range(8):
                E.I('v_mov_b32', v(acc + r), v(acc + 8 + r))
        else:
            E.branch('s_branch', L2)
    E.label(L2)
    E.wait(lgkm=0)
    E.barrier()
    for q in range(2):
        E.I('ds_read_b128', v(rcv + 4 * q, 4), v(t0), mods=f'offset:{1024 * q}')
    E.wait(vm=0, lgkm=0)
    for q in range(2):
        for d in range(2):
            x = res + 2 * q + d
            a0, a1 = acc + q * 4 + 2 * d, acc + q * 4 + 2 * d + 1
            E.I('v_lshlrev_b32', v(t0), 16, v(x))
            E.I('v_and_b32', v(x), '0xffff0000', v(x))
            E.I('v_add_f32', v(a0), v(a0), v(rcv + q * 4 + 2 * d))
            E.I('v_add_f32', v(a1), v(a1), v(rcv + q * 4 + 2 * d + 1))
            E.I('v_add_f32', v(a0), v(a0), v(t0))
            E.I('v_add_f32', v(a1), v(a1), v(x))
            E.I('v_cvt_pk_bf16_f32', v(x), v(a0), v(a1))
        E.I('buffer_store_dwordx2', v(res + 2 * q, 2), v(t2), s(j['sO'], 4), 0, mods=f'offen offset:{16 * q} {STF}')
    if 'sST' in j:
        for d in range(4):
            E.I('v_lshlrev_b32', v(acc + 2 * d), 16, v(res + d))
            E.I('v_and_b32', v(acc + 2 * d + 1), '0xffff0000', v(res + d))
        s1, s2 = rcv, rcv + 1
        E.I('v_add_f32', v(s1), v(acc), v(acc + 1))
        E.I('v_mul_f32', v(s2), v(acc), v(acc))
        for r in range(1, 8):
            if r > 1:
                E.I('v_add_f32', v(s1), v(s1), v(acc + r))
            E.I('v_fma_f32', v(s2), v(acc + r), v(acc + r), v(s2))
        half_sum(E, s1, t0)
        half_sum(E, s2, t0)
        E.I('v_lshlrev_b32', v(t0), 3, v(env['vL31']))
        E.I('s_lshl_b32', s(sT), s(env['sW']), 8)
        E.I('s_add_u32', s(sT), s(sT), env['SCR'] + 16384)
        E.I('v_add_u32', v(t1), s(sT), v(t0))
        E.I('ds_write_b64', v(t1), v(s1, 2))
        E.wait(lgkm=0)
        E.barrier()
        L3 = E.newlabel('red')
        E.I('s_and_b32', s(sT + 1), s(env['sW']), 5)
        E.I('s_cmp_lg_u32', s(sT + 1), 0)
        E.branch('s_cbranch_scc1', L3)
        for n, off in enumerate((256, 1024, 1280)):
            E.I('ds_read_b64', v(rcv + 2 + 2 * n, 2), v(t1), mods=f'offset:{off}')
        E.wait(lgkm=0)
        for n in range(3):
            E.I('v_add_f32', v(s1), v(s1), v(rcv + 2 + 2 * n))
            E.I('v_add_f32', v(s2), v(s2), v(rcv + 3 + 2 * n))
        E.I('s_lshl_b32', s(sT), s(sWm), 5)
        E.I('s_add_u32', s(sT), s(sT), s(env['sM0']))
        E.I('v_add_u32', v(t0), s(sT), v(env['vL31']))
        E.I('v_lshlrev_b32', v(t0), 6, v(t0))
        E.I('s_lshr_b32', s(sT), s(env['sN0']), 3)
        E.I('v_add_u32', v(t0), s(sT), v(t0))
        E.I('buffer_store_dwordx2', v(s1, 2), v(t0), s(j['sST'], 4), 0, mods='offen')
        E.label(L3)


MB = 1 << 20


def cfg_k1():
    def tilemap(E, sM0, sN0, sT):
        E.I('s_and_b32', s(sN0), 's2', 31)
        E.I('s_lshl_b32', s(sN0), s(sN0), 7)
        E.I('s_lshr_b32', s(sM0), 's2', 5)
        E.I('s_lshl_b32', s(sM0), s(sM0), 8)
    jobs = [
        dict(A=('x', 0, 2 * MB), lda=1024, W=[('wq', 0, 4 * MB)], ldw=8192, K=512, O=('ws', WS_Q, 16 * MB),
             ln=True, swap=True, epi=epi_qk),
        dict(A=('ckv', 0, 2 * MB), lda=1024, W=[('wuk', 0, 4 * MB)], ldw=8192, K=512, O=('ws', WS_K, 16 * MB),
             swap=True, epi=epi_qk),
        dict(A=('ckv', 0, 2 * MB), lda=1024, W=[('wuv', 0, 4 * MB)], ldw=8192, K=512, O=('ws', WS_V, 16 * MB),
             swap=False, epi=epi_v),
    ]
    return dict(BM=256, BN=128, BK=64, WM=4, WN=2, WK=1, NST=3, regions=[128], jobs=jobs, nwg=256, split=False,
                prefetch=lambda J: [(J[1]['sA'], 1), (J[1]['sW'][0], 2), (J[2]['sW'][0], 2)],
                frag=lambda jn: (0, 64, 32 * jn), tilemap=tilemap, grid=256, block=512)


def cfg_k1kv():
    def tilemap(E, sM0, sN0, sT):
        E.I('s_and_b32', s(sN0), 's2', 31)
        E.I('s_lshl_b32', s(sN0), s(sN0), 7)
        E.I('s_lshr_b32', s(sM0), 's2', 5)
        E.I('s_lshl_b32', s(sM0), s(sM0), 8)
    jobs = [dict(A=('ckv', 0, 2 * MB), lda=1024, W=[('wuk', 0, 4 * MB), ('wuv', 0, 4 * MB)], ldw=8192, K=512,
                 O=('ws', WS_K, 16 * MB), O2=('ws', WS_V, 16 * MB), LNX=(('x', 0, 2 * MB), ('ws', WS_XN, 2 * MB)),
                 swap=[True, True, False, False], epi=epi_kv)]
    return dict(BM=256, BN=256, BK=64, WM=4, WN=2, WK=1, NST=2, regions=[128, 128], jobs=jobs, nwg=256,
                frag=lambda jn: (jn >> 1, 64, 32 * (jn & 1)), tilemap=tilemap, grid=256, block=512)


def cfg_qembed():
    def tilemap(E, sM0, sN0, sT):
        E.I('s_and_b32', s(sN0), 's2', 31)
        E.I('s_lshl_b32', s(sN0), s(sN0), 7)
        E.I('s_lshr_b32', s(sM0), 's2', 5)
        E.I('s_lshl_b32', s(sT), s(sM0), 1)
        E.I('s_sub_u32', 's94', 14, s(sT))
        E.I('s_lshl_b32', 's94', 's94', 7)
        E.I('s_lshl_b32', s(sM0), s(sM0), 7)
    jobs = [dict(A=('ws', WS_XN, 2 * MB), lda=1024, W=[('wq', 0, 4 * MB)], ldw=8192, K=512, O=('ws', WS_Q, 16 * MB),
                 swap=True, epi=epi_qk)]
    return dict(BM=256, BN=128, BK=64, WM=4, WN=2, WK=1, NST=3, regions=[128], jobs=jobs, nwg=256, embed=True,
                frag=lambda jn: (0, 64, 32 * jn), tilemap=tilemap, grid=256, block=512)


def cfg_k4():
    small = 'k4small' in X

    def tilemap(E, sM0, sN0, sT):
        if small:
            E.I('s_lshr_b32', s(sN0), 's2', 4)
            E.I('s_lshl_b32', s(sN0), s(sN0), 6)
            E.I('s_and_b32', s(sM0), 's2', 7)
            E.I('s_lshl_b32', s(sM0), s(sM0), 1)
            E.I('s_bfe_u32', s(sT), 's2', 0x10003)
            E.I('s_add_u32', s(sM0), s(sM0), s(sT))
            E.I('s_lshl_b32', s(sM0), s(sM0), 7)
            return
        E.I('s_lshr_b32', s(sN0), 's2', 3)
        E.I('s_lshl_b32', s(sN0), s(sN0), 6)
        E.I('s_and_b32', s(sM0), 's2', 7)
        E.I('s_lshl_b32', s(sM0), s(sM0), 8)
    WB = 512 * 1792 * 2
    jobs = [dict(A=('ws', WS_H, 2 * MB), lda=1024, W=[('wg', 0, WB), ('wu', 0, WB)], ldw=3584, K=512,
                 O=('ws', WS_HH, 2048 * 3584), ST=('ws', WS_ST, 2048 * 64), extstats=True, ln=True, swap=True, epi=epi_glu)]
    if small:
        return dict(BM=128, BN=128, BK=64, WM=2, WN=2, WK=1, NST=2, regions=[64, 64], jobs=jobs, nwg=448,
                    frag=lambda jn: (jn, 32, 0), tilemap=tilemap, grid=448, block=256)
    return dict(BM=256, BN=128, BK=64, WM=4, WN=2, WK=1, NST=3, regions=[64, 64], jobs=jobs, nwg=224,
                frag=lambda jn: (jn, 32, 0), tilemap=tilemap, grid=224, block=512)


def cfg_red(which):
    def tilemap(E, sM0, sN0, sT):
        E.I('s_lshr_b32', s(sN0), 's2', 3)
        E.I('s_and_b32', s(sN0), s(sN0), 7)
        E.I('s_lshl_b32', s(sN0), s(sN0), 6)
        E.I('s_and_b32', s(sM0), 's2', 7)
        E.I('s_lshl_b32', s(sM0), s(sM0), 2)
        E.I('s_lshr_b32', s(sT), 's2', 6)
        E.I('s_add_u32', s(sM0), s(sM0), s(sT))
        E.I('s_lshl_b32', s(sM0), s(sM0), 6)
    if which == 3:
        jobs = [dict(A=('ws', WS_CTX, 16 * MB), lda=-262144, W=[('wo', 0, 4 * MB)], ldw=1024, K=4096, perm=True,
                     O=('ws', WS_H, 2 * MB), R=('x', 0, 2 * MB), ST=('ws', WS_ST, 2048 * 64), swap=True, epi=epi_red)]
    else:
        jobs = [dict(A=('ws', WS_HH, 2048 * 3584), lda=-114688, W=[('wd', 0, 1792 * 1024)], ldw=1024, K=1792, perm=True,
                     O=('out', 0, 2 * MB), R=('ws', WS_H, 2 * MB), swap=True, epi=epi_red)]
    return dict(BM=64, BN=64, BK=128, WM=2, WN=2, WK=2, NST=4, regions=[64], jobs=jobs, nwg=256, red=True,
                frag=lambda jn: (0, 32, 0), tilemap=tilemap, grid=256, block=512)
```
